```python
import torch

def _softmax(x, axis=-1):
    return torch.softmax(x, dim=axis)

def _gelu(x):
    return torch.nn.functional.gelu(x, approximate='tanh')

def _silu(x):
    return torch.nn.functional.silu(x)

def _sigmoid(x):
    return torch.sigmoid(x)

def _layernorm(x, axis=-1, eps=1e-05):
    m = x.mean(dim=axis, keepdim=True)
    v = x.var(dim=axis, keepdim=True, unbiased=False)
    return (x - m) / torch.sqrt(v + eps)

def _scatter_add(tgt, idx, src, axis=0):
    return tgt.clone().index_add_(axis, idx, src)

def _segment_sum(src, seg, n):
    out = torch.zeros((n,) + src.shape[1:], dtype=src.dtype)
    return out.index_add_(0, seg, src)

def _pad(x, pw):
    flat = tuple((v for pair in reversed(pw) for v in pair))
    return torch.nn.functional.pad(x, flat)
kernel_name = 'gated_mix__ssm_conv_s4d__mixer_gmlp__prompt'

def setup_inputs():

    _w = lambda a: (lambda t: t.to(torch.bfloat16) if t.is_floating_point() else t)(torch.as_tensor(a))

    def _A_setup():
        Bsz, L, D, N = (1, 2048, 512, 128)
        return {'u': _w((lambda *s: torch.randn(*s, dtype=torch.bfloat16) * 0.05)(Bsz, L, D)), 'log_A_real': _w((lambda *s: torch.randn(*s, dtype=torch.bfloat16) * 12.8)(D, N) * 0.5), 'A_imag': _w((lambda *s: torch.randn(*s, dtype=torch.bfloat16) * 0.05)(D, N) * 3.14), 'C_real': _w((lambda *s: torch.randn(*s, dtype=torch.bfloat16) * 1.6)(D, N) / N ** 0.5), 'C_imag': _w((lambda *s: torch.randn(*s, dtype=torch.bfloat16) * 3.2)(D, N) / N ** 0.5), 'log_dt': _w((lambda *s: torch.randn(*s, dtype=torch.bfloat16) * 0.05)(D) * 0.5 - 4.0), 'D_skip': _w((lambda *s: torch.randn(*s, dtype=torch.bfloat16) * 0.8)(D))}
    _A_in = _A_setup()

    def _B_setup():
        B, S, D, F = (1, 2048, 512, 1792)
        Fh = F // 2
        return {'x': _w((lambda *s: torch.randn(*s, dtype=torch.bfloat16) * 0.05)(B, S, D)), 'w_in': _w((lambda *s: torch.randn(*s, dtype=torch.bfloat16) * 0.4)(D, 2 * Fh)), 'w_sp': _w(0.01 * (lambda *s: torch.randn(*s, dtype=torch.bfloat16) * 0.4)(S, S)), 'b_sp': _w(1.0 + 0.01 * (lambda *s: torch.randn(*s, dtype=torch.bfloat16) * 0.05)(S)), 'w_out': _w((lambda *s: torch.randn(*s, dtype=torch.bfloat16) * 0.05)(Fh, D))}
    _B_in = _B_setup()
    return {'A_u': _A_in['u'], 'A_log_A_real': _A_in['log_A_real'], 'A_A_imag': _A_in['A_imag'], 'A_C_real': _A_in['C_real'], 'A_C_imag': _A_in['C_imag'], 'A_log_dt': _A_in['log_dt'], 'A_D_skip': _A_in['D_skip'], 'B_x': _B_in['x'], 'B_w_in': _B_in['w_in'], 'B_w_sp': _B_in['w_sp'], 'B_b_sp': _B_in['b_sp'], 'B_w_out': _B_in['w_out'], 'gate_w': _w((lambda *s: torch.randn(*s, dtype=torch.bfloat16) * 0.05)(512) * 16.0)}

def reference(A_u, A_log_A_real, A_A_imag, A_C_real, A_C_imag, A_log_dt, A_D_skip, B_x, B_w_in, B_w_sp, B_b_sp, B_w_out, gate_w):

    def _A_ref(u, log_A_real, A_imag, C_real, C_imag, log_dt, D_skip):
        L = u.shape[1]
        dt = torch.exp(log_dt)
        A = -torch.exp(log_A_real) + 1j * A_imag
        C = (C_real + 1j * C_imag) * dt[:, None]
        pos = (lambda x, dt: x.to(dt))(torch.arange(L), log_dt.dtype)
        P = torch.exp((A * dt[:, None])[:, :, None] * pos[None, None, :])
        K = 2.0 * torch.einsum('dn,dnl->dl', C, P).real
        L2 = 2 * L
        u_t = (lambda x, *d: x.permute(*d))(u, 0, 2, 1)
        Kf = (lambda x, *a, **k: torch.fft.rfft(x.float(), *a, **k))(K, L2)
        Uf = (lambda x, *a, **k: torch.fft.rfft(x.float(), *a, **k))(u_t, L2)
        y = (lambda x, *a, **k: torch.fft.irfft(x, *a, **k).to(torch.bfloat16))(Uf * Kf[None, :, :], L2)[:, :, :L]
        y = (lambda x, *d: x.permute(*d))(y, 0, 2, 1)
        return y + u * D_skip[None, None, :]

    def _B_ref(x, w_in, w_sp, b_sp, w_out):
        B, S, D = x.shape
        F = w_in.shape[-1]
        Fh = F // 2
        z = _gelu(torch.einsum('bsd,df->bsf', x, w_in))
        z1 = z[..., :Fh].clone()
        z2 = _layernorm(z[..., Fh:], axis=-1)
        g = torch.einsum('ts,bsf->btf', w_sp, z2) + b_sp[None, :, None]
        return torch.einsum('bsf,fd->bsd', z1 * g, w_out)
    x = A_u
    g = _sigmoid((x * gate_w).sum(-1, keepdims=True))
    a = _A_ref(x, A_log_A_real, A_A_imag, A_C_real, A_C_imag, A_log_dt, A_D_skip)
    b = _B_ref(x, B_w_in, B_w_sp, B_b_sp, B_w_out)
    return g * a + (1 - g) * b
```

```python
KARG = dict(u=0, logA=8, Aim=16, Cre=24, Cim=32, logdt=40, Dskip=48, Bx=56, win=64, wsp=72,
            bsp=80, wout=88, gatew=96, out=104, dbg=112, ws=120)
NBYTES = dict(u=2048*512*2, logA=512*128*2, Aim=512*128*2, Cre=512*128*2, Cim=512*128*2, logdt=1024,
              Dskip=1024, Bx=2048*512*2, win=512*1792*2, wsp=2048*2048*2, bsp=4096, wout=896*512*2,
              gatew=1024, out=2048*512*2, dbg=256, ws=268435456)


class Asm:
    def __init__(self):
        self.lines = []
        self._uid = 0

    def __call__(self, s):
        for ln in s.strip('\n').split('\n'):
            self.lines.append('    ' + ln.strip() if not ln.strip().endswith(':') else ln.strip())

    def label(self, name):
        self.lines.append(name + ':')

    def uid(self, base):
        self._uid += 1
        return f'{base}_{self._uid}'

    def text(self):
        return '\n'.join(self.lines) + '\n'


def vr(a, n=1):
    return f'v{a}' if n == 1 else f'v[{a}:{a+n-1}]'


def ar(a, n=1):
    return f'a{a}' if n == 1 else f'a[{a}:{a+n-1}]'


def sr(a, n=1):
    return f's{a}' if n == 1 else f's[{a}:{a+n-1}]'


def kernel_header(name):
    return (f'.globl {name}\n.p2align 8\n.type {name},@function\n{name}:\n')


def kernel_desc(name, vgpr, accum, sgpr=102):
    return f'''.amdhsa_kernel {name}
  .amdhsa_next_free_vgpr {vgpr}
  .amdhsa_next_free_sgpr {sgpr}
  .amdhsa_accum_offset {accum}
  .amdhsa_group_segment_fixed_size 0
  .amdhsa_kernarg_size 128
  .amdhsa_user_sgpr_count 2
  .amdhsa_user_sgpr_kernarg_segment_ptr 1
  .amdhsa_system_sgpr_workgroup_id_x 1
  .amdhsa_float_denorm_mode_32 3
.end_amdhsa_kernel
'''


def srd(a, dst, ptr, nbytes):
    a(f's_mov_b32 s{dst}, s{ptr}')
    a(f's_and_b32 s{dst+1}, s{ptr+1}, 0xffff')
    a(f's_mov_b32 s{dst+2}, {nbytes}')
    a(f's_mov_b32 s{dst+3}, 0x20000')
```

```python
from gen import *

WS4 = f's[{SRD_WS}:{SRD_WS+3}]'
S_L2E, S_L2LO, S_C, S_PAR, S_WP, S_F = 74, 75, 76, 77, 78, 79

V2_WD = 1
V2_Z = 5
V2_WA = 6
V2_ACC = 12
V2_WF = 44
V2_ZR = 76
V2_Z1 = 204
S_WSO, S_WM2, S_ZSO = 61, 62, 63
S_ZM = 72


def w_dma(g, c):
    for n in range(4):
        g.dma(SRD_A, V2_WD + n, S_WSO, 256 * c, S_WM2, L_RING2 + (c % 4) * 16384 + n * 1024)


def gemm2_setup_dma(g):
    srd(g, SRD_A, P['wsp'], NBYTES['wsp'])
    g('v_lshrrev_b32 v14, 4, v0')
    g('v_and_b32 v15, 15, v0')
    g('v_xor_b32 v15, v15, v14')
    g(f's_lshl_b32 s20, s{S_W}, 4')
    g('v_add_u32 v14, s20, v14')
    g('v_lshlrev_b32 v14, 12, v14')
    for n in range(4):
        g(f'v_xor_b32 v16, {4*n}, v15')
        g('v_lshl_add_u32 v16, v16, 4, v14')
        g(f'v_add_u32 v{V2_WD+n}, {n*4*4096}, v16')
    g(f's_lshl_b32 s{S_WSO}, s{S_RB}, 18')
    g(f's_lshl_b32 s{S_WM2}, s{S_W}, 12')
    for c in range(4):
        w_dma(g, c)


def gemm2_setup(g):
    g(f'v_lshlrev_b32 v{V2_Z}, 4, v0')
    g('v_and_b32 v14, 15, v0')
    g('v_lshrrev_b32 v15, 4, v0')
    g('v_xor_b32 v15, v15, v14')
    g('v_lshlrev_b32 v14, 8, v14')
    g(f'v_add_u32 v14, {L_RING2}, v14')
    for kk in range(4):
        g(f'v_xor_b32 v16, {4*kk}, v15')
        g(f'v_lshl_add_u32 v{V2_WA+kk}, v16, 4, v14')
    g(f's_mul_i32 s{S_ZSO}, s{S_FB}, 458752')
    g(f's_lshl_b32 s20, s{S_W}, 11')
    g(f's_add_u32 s{S_ZSO}, s{S_ZSO}, s20')
    g(f's_add_u32 s{S_ZSO}, s{S_ZSO}, {WS_Z2N}')
    g(f's_cmp_eq_u32 s{S_W}, 3')
    g(f's_cselect_b32 s{S_ZM}, 1, -1')
    g(f's_cselect_b32 s{S_ZM+1}, 0, -1')
    for tt in range(4):
        g(f'v_lshlrev_b32 v{V_PAR+tt}, 16, v{V_PAR+tt}')


def flag1_poll(g):
    lab = g.uid('L_np')
    g(f's_cmp_eq_u32 s{S_W}, 0')
    g(f's_cbranch_scc0 {lab}')
    g(f's_mul_i32 s20, s{S_FB}, 7')
    g('s_add_u32 s21, s20, 6')
    g('s_lshr_b32 s20, s20, 3')
    g('s_lshr_b32 s21, s21, 3')
    g('s_sub_u32 s21, s21, s20')
    g('s_lshl_b32 s20, s20, 8')
    g(f's_add_u32 s20, s20, {WS_FLAG1}')
    g('v_lshrrev_b32 v14, 5, v0')
    g('v_mul_u32_u24 v14, s21, v14')
    g('v_lshlrev_b32 v14, 8, v14')
    g('v_and_b32 v15, 31, v0')
    g('v_lshlrev_b32 v15, 3, v15')
    g('v_add_u32 v14, v14, v15')
    g(f's_mov_b32 s21, {WS_FLAG1 + 7*256}')

    def loads():
        g(f'buffer_load_dwordx2 v[16:17], v14, {WS4}, s20 offen sc1')
        g(f'buffer_load_dwordx2 v[18:19], v15, {WS4}, s21 offen sc1')
    g.poll(loads, [(16, 17), (18, 19)], 204)
    g('s_cmp_eq_u32 s2, 0')
    g(f's_cbranch_scc0 {lab}')
    g(f's_add_u32 s20, s{S_EPOCH}, 1')
    g('v_mov_b32 v16, s20')
    g('v_mov_b32 v17, 0')
    g.one_lane()
    g(f'buffer_store_dword v16, v17, {WS4}, 0 offen sc1')
    g.all_lanes()
    g.label(lab)


def gemm2(g):
    q = ['W'] * 0
    queue = [('W', c) for c in range(4) for _ in range(4)]

    def after(tag):
        last = max(i for i, x in enumerate(queue) if x == tag)
        return len(queue) - 1 - last

    def z_loads(c):
        for ft in range(2):
            if ft:
                g(f's_mov_b64 exec, s[{S_ZM}:{S_ZM+1}]')
            for kk in range(4):
                r = V2_ZR + (c % 4) * 32 + kk * 8 + ft * 4
                g(f's_add_u32 s20, s{S_ZSO}, {(4*c + kk) * 7168}')
                g(f'buffer_load_dwordx4 v[{r}:{r+3}], v{V2_Z}, {WS4}, s20 offen offset:{ft*1024} sc1')
                queue.append(('Z', c))
        g.all_lanes()

    def w_reads(c, kk):
        f = V2_WF + (kk % 2) * 16
        for tt in range(4):
            g(f'ds_read_b128 v[{f+4*tt}:{f+4*tt+3}], v{V2_WA+kk} offset:{(c%4)*16384 + tt*4096}')

    def mfmas(c, kk):
        f = V2_WF + (kk % 2) * 16
        for ft in range(2):
            z = V2_ZR + (c % 4) * 32 + kk * 8 + ft * 4
            for tt in range(4):
                d = V2_ACC + 16 * ft + 4 * tt
                cc = '0' if (c == 0 and kk == 0) else f'v[{d}:{d+3}]'
                g(f'v_mfma_f32_16x16x32_bf16 v[{d}:{d+3}], v[{z}:{z+3}], v[{f+4*tt}:{f+4*tt+3}], {cc}')

    for c in range(4):
        z_loads(c)
    w_reads(0, 0)
    for c in range(16):
        for kk in range(3):
            w_reads(c, kk + 1)
            if kk == 0:
                g(f's_waitcnt vmcnt({after(("Z", c))}) lgkmcnt(4)')
            else:
                g('s_waitcnt lgkmcnt(4)')
            mfmas(c, kk)
        if c < 15:
            g(f's_waitcnt vmcnt({after(("W", c + 1))}) lgkmcnt(0)')
            g('s_barrier')
            if c in (3, 7, 11):
                g.stamp(f'q{c+1}')
            w_reads(c + 1, 0)
            if c + 4 < 16:
                w_dma(g, c + 4)
                queue.extend([('W', c + 4)] * 4)
            mfmas(c, 3)
            if c + 4 < 16:
                z_loads(c + 4)
            if c == 14:
                g('v_lshlrev_b32 v11, 3, v0')
                g(f's_lshl_b32 s20, s{S_W}, 10')
                g(f's_add_u32 s20, s20, {L_Z1}')
                g('v_add_u32 v10, s20, v11')
                for tt in range(4):
                    for ft in range(2):
                        r = V2_Z1 + 4 * tt + 2 * ft
                        g(f'ds_read_b64 v[{r}:{r+1}], v10 offset:{tt*7*512 + ft*512}')
        else:
            g('s_waitcnt lgkmcnt(0)')
            mfmas(c, 3)
    g.stamp('g2end')
    g(f's_lshl_b32 s20, s{S_RB}, 3')
    g(f's_add_u32 s20, s20, s{S_FB}')
    g('s_mul_i32 s20, s20, 14336')
    g(f's_lshl_b32 s21, s{S_W}, 10')
    g('s_add_u32 s20, s20, s21')
    g(f's_add_u32 s20, s20, {WS_H}')
    T = V2_ZR
    for tt in range(4):
        for ft in range(2):
            z = V2_Z1 + 4 * tt + 2 * ft
            t = T + 8 * tt + 4 * ft
            g(f'v_lshlrev_b32 v{t}, 16, v{z}')
            g(f'v_and_b32 v{t+1}, 0xffff0000, v{z}')
            g(f'v_lshlrev_b32 v{t+2}, 16, v{z+1}')
            g(f'v_and_b32 v{t+3}, 0xffff0000, v{z+1}')
    for tt in range(4):
        for ft in range(2):
            d = V2_ACC + 16 * ft + 4 * tt
            for r in range(4):
                g(f'v_add_f32 v{d+r}, v{d+r}, v{V_PAR+tt}')
    lab = g.uid('L_h3'); done = g.uid('L_hd')
    for tt in range(4):
        for ft in range(2):
            d = V2_ACC + 16 * ft + 4 * tt
            t = T + 8 * tt + 4 * ft
            for r in range(4):
                g(f'v_mul_f32 v{d+r}, v{d+r}, v{t+r}')
        o = T + 32 + 4 * tt
        for ft in range(2):
            d = V2_ACC + 16 * ft + 4 * tt
            g(f'v_cvt_pk_bf16_f32 v{o+2*ft}, v{d}, v{d+1}')
            g(f'v_cvt_pk_bf16_f32 v{o+2*ft+1}, v{d+2}, v{d+3}')
    g(f's_cmp_eq_u32 s{S_W}, 3')
    g(f's_cbranch_scc1 {lab}')
    for tt in range(4):
        o = T + 32 + 4 * tt
        g(f's_add_u32 s21, s20, {tt*3584}')
        g(f'buffer_store_dwordx4 v[{o}:{o+3}], v{V2_Z}, {WS4}, s21 offen sc1')
    g(f's_branch {done}')
    g.label(lab)
    for tt in range(4):
        o = T + 32 + 4 * tt
        g(f's_add_u32 s21, s20, {tt*3584}')
        g(f'buffer_store_dwordx2 v[{o}:{o+1}], v11, {WS4}, s21 offen sc1')
    g.label(done)
    g('s_waitcnt vmcnt(0)')


def exp_bf16(g, x, t):
    g(f'v_mul_f32 v{t}, s{S_L2E}, v{x}')
    g(f'v_fma_f32 v{t+1}, v{x}, s{S_L2E}, -v{t}')
    g(f'v_fma_f32 v{t+1}, v{x}, s{S_L2LO}, v{t+1}')
    g(f'v_rndne_f32 v{t+2}, v{t}')
    g(f'v_sub_f32 v{t}, v{t}, v{t+2}')
    g(f'v_add_f32 v{t}, v{t}, v{t+1}')
    g(f'v_exp_f32 v{t}, v{t}')
    g(f'v_cvt_i32_f32 v{t+2}, v{t+2}')
    g(f'v_ldexp_f32 v{t}, v{t}, v{t+2}')
    g(f'v_cvt_pk_bf16_f32 v{t}, v{t}, v{t}')
    g(f'v_lshlrev_b32 v{x}, 16, v{t}')


def kgen(g):
    AL, TH, C0 = 2, 3, 4
    t = 6
    g(f's_sub_u32 s{S_WP}, s{S_W}, 4')
    g(f's_lshr_b32 s{S_C}, s{S_WP}, 1')
    g(f's_and_b32 s{S_PAR}, s{S_WP}, 1')
    g(f's_mov_b32 s{S_L2E}, 0x3fb8aa3b')
    g(f's_mov_b32 s{S_L2LO}, {fbits(1.925963033500011e-08)}')
    g(f's_lshl_b32 s20, s{S_C}, 4')
    g(f's_lshr_b32 s21, s{S_LDT}, s20')
    g('s_lshl_b32 s21, s21, 16')
    g(f's_lshr_b32 s{S_DSK}, s{S_DSK}, s20')
    g(f's_lshl_b32 s{S_DSK}, s{S_DSK}, 16')
    g(f's_mul_i32 s20, s{S_WP}, {SCR_W}')
    g(f'v_lshl_add_u32 v1, v0, 2, s20')
    g('v_mov_b32 v12, s21')
    for k in range(4):
        g(f'v_lshlrev_b32 v{V_PAR+k}, 16, v{V_PAR+k}')
    exp_bf16(g, 12, t)
    exp_bf16(g, V_PAR, t)
    g(f'v_mul_f32 v{AL}, v{V_PAR}, v12')
    g(f'v_mul_f32 v{TH}, v{V_PAR+1}, v12')
    g(f'v_mul_f32 v{AL}, {fbits(-1.4426950408889634)}, v{AL}')
    g(f'v_mul_f32 v{TH}, 0.15915494, v{TH}')
    g(f'v_max_f32 v{t}, |v{V_PAR+2}|, |v{V_PAR+3}|')
    for d in (8, 4, 2, 1):
        g(f'v_max_f32_dpp v{t}, v{t}, v{t} row_ror:{d} row_mask:0xf bank_mask:0xf')
    for k in range(4):
        g(f'v_readlane_b32 s{20+k}, v{t}, {16*k}')
    g('s_max_u32 s20, s20, s21')
    g('s_max_u32 s22, s22, s23')
    g('s_max_u32 s20, s20, s22')
    g('s_lshr_b32 s20, s20, 23')
    g('s_min_u32 s20, s20, 253')
    g('s_sub_u32 s21, 254, s20')
    g('s_lshl_b32 s21, s21, 23')
    g('s_lshl_b32 s20, s20, 23')
    g(f'v_mul_f32 v{C0}, s21, v{V_PAR+2}')
    g(f'v_mul_f32 v{C0+1}, s21, v{V_PAR+3}')
    g('v_add_f32 v12, v12, v12')
    g('v_mul_f32 v12, s20, v12')
    g(f'v_readfirstlane_b32 s{S_F}, v12')
    rot = [0]

    def emit(row, x):
        o = 78 + rot[0] % 8
        rot[0] += 1
        g(f'v_cvt_pk_f16_f32 v{o}, v{x}, v{x+1}')
        g(f'ds_write_b32 v1, v{o} offset:{row*272}')

    def anchor(d, p, conj=False):
        g(f'v_mul_f32 v{t}, {fbits(float(p))}, v{AL}')
        g(f'v_mul_f32 v{t+1}, {fbits(float(p))}, v{TH}')
        g(f'v_exp_f32 v{t}, v{t}')
        g(f'v_fract_f32 v{t+1}, v{t+1}')
        g(f'v_cos_f32 v{t+2}, v{t+1}')
        g(f'v_sin_f32 v{t+3}, v{t+1}')
        g(f'v_mul_f32 v{d}, v{t}, v{t+2}')
        g(f'v_mul_f32 v{d+1}, {"-" if conj else ""}v{t}, v{t+3}')

    def cmul(d, x, y):
        g(f'v_mul_f32 v{t}, v{x+1}, v{y+1}')
        g(f'v_mul_f32 v{t+1}, v{x+1}, v{y}')
        g(f'v_fma_f32 v{d}, v{x}, v{y}, -v{t}')
        g(f'v_fma_f32 v{d+1}, v{x}, v{y+1}, v{t+1}')

    def csq(d, x):
        g(f'v_mul_f32 v{t}, v{x+1}, v{x+1}')
        g(f'v_add_f32 v{t+1}, v{x}, v{x}')
        g(f'v_fma_f32 v{d}, v{x}, v{x}, -v{t}')
        g(f'v_mul_f32 v{d+1}, v{t+1}, v{x+1}')
    W1, W2, W4, W256, W512, W1024 = 12, 14, 16, 18, 20, 22
    R1, R2, R3, TM, S0, S1, T0, T1, Q0, Q1 = 24, 26, 28, 30, 32, 34, 36, 38, 40, 42
    anchor(W1, 1); anchor(W256, 256); anchor(W1024, 1024)
    csq(W2, W1); csq(W512, W256); csq(W4, W2)
    emit(0, C0)
    cmul(R1, C0, W1); emit(1, R1)
    cmul(R2, C0, W2); emit(2, R2)
    cmul(R3, R1, W2); emit(3, R3)
    for k, x in enumerate((C0, R1, R2, R3)):
        cmul(TM, x, W4); emit(4 + k, TM)
    cmul(S0, C0, W256); emit(8, S0)
    cmul(S1, S0, W2); emit(9, S1)
    cmul(TM, S0, W4); emit(10, TM)
    cmul(TM, S1, W4); emit(11, TM)
    cmul(T0, C0, W512); emit(12, T0)
    cmul(T1, T0, W4); emit(13, T1)
    cmul(TM, T0, W256); emit(14, TM)
    cmul(TM, T1, W256); emit(15, TM)
    cmul(Q0, C0, W1024); emit(16, Q0)
    cmul(Q1, Q0, W256); emit(17, Q1)
    cmul(TM, Q0, W512); emit(18, TM)
    cmul(TM, Q1, W512); emit(19, TM)
    cmul(TM, Q0, W1024); emit(20, TM)
    B = lambda j: 44 + 2 * (j - 1)
    g(f'v_mov_b32 v{TM}, 1.0')
    g(f'v_mov_b32 v{TM+1}, 0')
    emit(21, TM)
    anchor(B(1), 8, True); anchor(B(8), 64, True)
    emit(22, B(1)); emit(29, B(8))
    csq(B(2), B(1)); emit(23, B(2))
    csq(B(16), B(8)); emit(37, B(16))
    cmul(B(3), B(2), B(1)); emit(24, B(3))
    csq(B(4), B(2)); emit(25, B(4))
    for j in range(5, 8):
        cmul(B(j), B(4), B(j - 4)); emit(21 + j, B(j))
    for j in range(9, 16):
        cmul(B(j), B(8), B(j - 8)); emit(21 + j, B(j))
    for j in range(17, 32):
        cmul(TM, B(16), B(j - 16)); emit(21 + j, TM)
    g('v_and_b32 v2, 31, v0')
    g('v_mul_u32_u24 v2, 272, v2')
    g('v_lshrrev_b32 v3, 5, v0')
    g('v_lshl_add_u32 v2, v3, 4, v2')
    g(f's_mul_i32 s20, s{S_WP}, {SCR_W}')
    g('v_add_u32 v2, s20, v2')
    FR, ACC = 88, 152
    for s in range(8):
        g(f'ds_read_b128 v[{FR+8*s}:{FR+8*s+3}], v2 offset:{32*s}')
        g(f'ds_read_b128 v[{FR+8*s+4}:{FR+8*s+7}], v2 offset:{21*272 + 32*s}')
    g('v_and_b32 v4, 31, v0')
    g(f's_mul_i32 s20, s{S_WP}, {T_SZ}')
    g(f's_add_u32 s20, s20, {L_T + 16}')
    g('v_lshlrev_b32 v5, 5, v4')
    g('v_lshl_add_u32 v5, v3, 4, v5')
    g('v_add_u32 v5, s20, v5')
    g('v_lshl_add_u32 v6, v4, 4, s20')
    g('v_lshl_add_u32 v7, v4, 3, s20')
    g('v_lshl_add_u32 v8, v4, 2, s20')
    for s in range(8):
        g(f's_waitcnt lgkmcnt({14 - 2*s})')
        c = '0' if s == 0 else f'v[{ACC}:{ACC+15}]'
        g(f'v_mfma_f32_32x32x16_f16 v[{ACC}:{ACC+15}], v[{FR+8*s}:{FR+8*s+3}], v[{FR+8*s+4}:{FR+8*s+7}], {c}')
    for r in range(12):
        g(f'v_mul_f32 v{ACC+r}, s{S_F}, v{ACC+r}')
    g(f'ds_write_b128 v5, v[{ACC}:{ACC+3}]')
    g('s_mov_b32 exec_hi, 0')
    g(f'ds_write_b128 v6, v[{ACC+4}:{ACC+7}] offset:1024')
    for i in range(4):
        g(f'ds_write_b32 v8, v{ACC+8+i} offset:{2048 + 128*i}')
    g('s_mov_b32 exec_hi, -1')
    g('s_mov_b32 exec_lo, 0')
    g(f'ds_write_b64 v7, v[{ACC+4}:{ACC+5}] offset:1536')
    g(f'ds_write_b64 v7, v[{ACC+6}:{ACC+7}] offset:1792')
    g('s_mov_b32 exec_hi, 1')
    g(f'ds_write_b32 v8, v{ACC+8} offset:2560')
    g('v_mov_b32 v9, 0')
    g('v_add_u32 v8, -4, v8')
    g('ds_write_b32 v8, v9')
    g.all_lanes()


def ssm_expand(g):
    UL = 12
    A = 32
    Bv = 44
    O = 56
    g(f's_lshl_b32 s20, s{S_FB}, 4')
    g(f's_lshr_b32 s21, s{S_RB}, 1')
    g('s_add_u32 s20, s20, s21')
    g('s_lshl_b32 s20, s20, 14')
    g(f's_lshl_b32 s21, s{S_WP}, 12')
    g('s_add_u32 s20, s20, s21')
    g(f's_add_u32 s20, s20, {WS_U}')
    g('v_lshlrev_b32 v1, 4, v0')
    g(f's_and_b32 s21, s{S_RB}, 1')
    g('s_lshl_b32 s21, s21, 1')
    g('s_lshl_b32 s72, 0x33333333, s21')
    g('s_mov_b32 s73, s72')
    g('s_mov_b64 exec, s[72:73]')
    for m in range(4):
        g(f'buffer_load_dwordx4 v[{UL+4*m}:{UL+4*m+3}], v1, {WS4}, s20 offen offset:{1024*m} sc1')
    g.all_lanes()
    g(f's_mul_i32 s20, s{S_C}, {2*T_SZ}')
    g(f's_add_u32 s20, s20, {L_T + 16}')
    g(f's_mul_i32 s21, s{S_C}, {R_CH}')
    g(f's_add_u32 s21, s21, {L_R + 4080}')
    g('v_lshlrev_b32 v2, 4, v0')
    g('v_sub_u32 v2, s21, v2')
    lab = g.uid('L_exb'); done = g.uid('L_exd')
    g(f's_cmp_eq_u32 s{S_PAR}, 1')
    g(f's_cbranch_scc1 {lab}')

    def pack_write(K, Kp, off):
        pr = [(K[7], K[6]), (K[5], K[4]), (K[3], K[2]), (K[1], K[0]), (K[6], K[5]), (K[4], K[3]), (K[2], K[1]), (K[0], Kp)]
        for k, (lo, hi) in enumerate(pr):
            g(f'v_cvt_pk_bf16_f32 v{O+k}, v{lo}, v{hi}')
        g(f'v_add_u32 v3, {-off}, v2')
        g(f'ds_write_b128 v3, v[{O}:{O+3}]')
        g(f'ds_write_b128 v3, v[{O+4}:{O+7}] offset:{R_COPY}')

    def range3(m0):
        g(f'v_lshl_add_u32 v3, v0, 2, s20')
        o = (512 + m0 - 128)
        g(f'v_add_u32 v3, {4*o}, v3')
        g(f'v_add_u32 v4, {T_SZ}, v3')
        g(f'ds_read2_b32 v[{A}:{A+1}], v3 offset0:0 offset1:1')
        g(f'ds_read2_b32 v[{Bv}:{Bv+1}], v4 offset0:0 offset1:1')
        g('v_and_b32 v5, 1, v0')
        g('v_cmp_eq_u32 vcc, 1, v5')
        g('s_waitcnt lgkmcnt(0)')
        g(f'v_add_f32 v{A}, v{A}, v{Bv}')
        g(f'v_add_f32 v{A+1}, v{A+1}, v{Bv+1}')
        g(f'v_cndmask_b32 v{A+2}, v{A}, v{A+1}, vcc')
        pack_write([A, A, A, A, A + 2, A + 1, A + 1, A + 1], A, 16 * m0)
    g('v_lshlrev_b32 v3, 5, v0')
    g('v_lshl_add_u32 v4, v0, 4, 0')
    g('v_add_u32 v4, 512, v4')
    g('v_cmp_gt_u32 vcc, 32, v0')
    g(f's_mov_b64 s[72:73], vcc')
    g('v_cndmask_b32 v3, v4, v3, vcc')
    g('v_add_u32 v3, s20, v3')
    g('v_add_u32 v4, -4, v3')
    for tb, X in ((0, A), (1, Bv)):
        g(f'ds_read_b128 v[{X}:{X+3}], v3 offset:{tb*T_SZ}')
        g(f'ds_read_b128 v[{X+4}:{X+7}], v3 offset:{tb*T_SZ + 16}')
        g(f'ds_read_b32 v{X+8}, v4 offset:{tb*T_SZ}')
    g('v_cmp_gt_u32 s[22:23], 33, v0')
    g('s_waitcnt lgkmcnt(0)')
    for k in range(9):
        g(f'v_add_f32 v{A+k}, v{A+k}, v{Bv+k}')
    map1 = [0, 0, 1, 2, 2, 2, 3, 4]
    for e in range(1, 8):
        g(f'v_cndmask_b32 v{Bv+e}, v{A+map1[e]}, v{A+e}, s[72:73]')
    g(f'v_cndmask_b32 v{Bv+8}, v{A}, v{A+8}, s[22:23]')
    pack_write([A] + [Bv + e for e in range(1, 8)], Bv + 8, 0)
    range3(128)
    g('v_mov_b32 v6, 0'); g('v_mov_b32 v7, 0'); g('v_mov_b32 v8, 0'); g('v_mov_b32 v9, 0')
    g(f's_mul_i32 s21, s{S_C}, {UL_SZ}')
    g(f's_add_u32 s21, s21, {L_UL}')
    g('v_lshl_add_u32 v3, v0, 4, s21')
    g('s_mov_b32 exec_hi, 0')
    g('ds_write_b128 v3, v[6:9]')
    g.all_lanes()
    g(f's_branch {done}')
    g.label(lab)
    g('v_lshl_add_u32 v3, v0, 3, s20')
    for tb, X in ((0, A), (1, Bv)):
        g(f'ds_read_b64 v[{X}:{X+1}], v3 offset:{tb*T_SZ + 4*384}')
        g(f'ds_read_b32 v{X+2}, v3 offset:{tb*T_SZ + 4*386}')
    g('s_waitcnt lgkmcnt(0)')
    for k in range(3):
        g(f'v_add_f32 v{A+k}, v{A+k}, v{Bv+k}')
    pack_write([A, A, A, A + 1, A + 1, A + 1, A + 2, A + 2], A, 16 * 64)
    range3(192)
    g('v_mov_b32 v6, 0'); g('v_mov_b32 v7, 0'); g('v_mov_b32 v8, 0'); g('v_mov_b32 v9, 0')
    g('v_lshrrev_b32 v3, 2, v0')
    g(f'v_mul_u32_u24 v3, {R_COPY}, v3')
    g('v_and_b32 v4, 3, v0')
    g('v_lshl_add_u32 v3, v4, 4, v3')
    g(f's_mul_i32 s21, s{S_C}, {R_CH}')
    g(f's_add_u32 s21, s21, {L_R + 4096}')
    g('v_add_u32 v3, s21, v3')
    g('s_mov_b64 exec, 0xff')
    g('ds_write_b128 v3, v[6:9]')
    g.all_lanes()
    g.label(done)
    g('v_and_b32 v3, 1, v0')
    g(f'v_mul_u32_u24 v3, {UL_SZ}, v3')
    g('v_lshrrev_b32 v4, 2, v0')
    g('v_lshl_add_u32 v3, v4, 4, v3')
    g(f's_lshl_b32 s21, s{S_WP}, 10')
    g(f's_add_u32 s21, s21, {L_UL + 512}')
    g('v_add_u32 v3, s21, v3')
    g(f's_and_b32 s21, s{S_RB}, 1')
    g('s_lshl_b32 s21, s21, 1')
    g('s_lshl_b32 s72, 0x33333333, s21')
    g('s_mov_b32 s73, s72')
    g('s_waitcnt vmcnt(0)')
    g('s_mov_b64 exec, s[72:73]')
    for m in range(4):
        g(f'ds_write_b128 v3, v[{UL+4*m}:{UL+4*m+3}] offset:{256*m}')
    g.all_lanes()
    g('s_waitcnt lgkmcnt(0)')


VC_A, VC_B, VC_ACC, VC_SET = 4, 8, 12, 44


def conv_setup(g):
    g('v_and_b32 v14, 15, v0')
    g('v_lshrrev_b32 v15, 4, v0')
    g('v_lshlrev_b32 v16, 3, v15')
    g('v_sub_u32 v16, v16, v14')
    g('v_add_u32 v16, 2031, v16')
    g('v_lshrrev_b32 v17, 1, v16')
    g('v_lshlrev_b32 v17, 2, v17')
    g('v_and_b32 v16, 1, v16')
    g(f'v_mul_u32_u24 v16, {R_COPY}, v16')
    g('v_add_u32 v16, v16, v17')
    g(f's_mul_i32 s20, s{S_C}, {R_CH}')
    g(f's_lshl_b32 s21, s{S_PAR}, 6')
    g('s_sub_u32 s20, s20, s21')
    g(f's_add_u32 s20, s20, {L_R}')
    for q in range(4):
        g(f's_sub_u32 s22, s20, {512*(2*q+1) + 448}')
        g(f'v_add_u32 v{VC_A+q}, s22, v16')
    g('v_lshlrev_b32 v16, 5, v14')
    g('v_lshl_add_u32 v16, v15, 4, v16')
    g(f's_mul_i32 s20, s{S_C}, {UL_SZ}')
    g('s_sub_u32 s20, s20, s21')
    g(f's_add_u32 s20, s20, {L_UL + 480 - 384}')
    g(f'v_add_u32 v{VC_B}, s20, v16')


def conv_reads(g, n):
    s = VC_SET + (n % 2) * 64
    for p in range(8):
        a = s + 4 * p; b = s + 32 + 4 * p
        o = (128 if p % 2 == 0 else 0) + 16 * (7 - 2 * n)
        g(f'ds_read2_b32 v[{a}:{a+1}], v{VC_A + p//2} offset0:{o} offset1:{o+1}')
        g(f'ds_read2_b32 v[{a+2}:{a+3}], v{VC_A + p//2} offset0:{o+2} offset1:{o+3}')
        g(f'ds_read_b128 v[{b}:{b+3}], v{VC_B} offset:{512*p + 128*(3-n)}')


def conv_mfma(g, n, half):
    s = VC_SET + (n % 2) * 64
    lst = [(j, p) for j in range(8) for p in range(j + 1)]
    lst = lst[:18] if half == 0 else lst[18:]
    for j, p in lst:
        d = VC_ACC + 4 * j
        c = '0' if (n == 0 and p == 0) else f'v[{d}:{d+3}]'
        a = s + 4 * p; b = s + 32 + 4 * (j - p)
        g(f'v_mfma_f32_16x16x32_bf16 v[{d}:{d+3}], v[{a}:{a+3}], v[{b}:{b+3}], {c}')


def conv_exchange(g):
    lab = g.uid('L_cx'); done = g.uid('L_cxd')
    g(f's_lshl_b32 s20, s{S_WP}, 12')
    g(f's_add_u32 s20, s20, {L_YX}')
    g('v_lshl_add_u32 v1, v0, 4, s20')
    g(f's_cmp_eq_u32 s{S_PAR}, 1')
    g(f's_cbranch_scc1 {lab}')
    for k in range(4):
        d = VC_ACC + 16 + 4 * k
        g(f'ds_write_b128 v1, v[{d}:{d+3}] offset:{1024*k}')
    g(f's_branch {done}')
    g.label(lab)
    for k in range(4):
        d = VC_ACC + 4 * k
        g(f'ds_write_b128 v1, v[{d}:{d+3}] offset:{1024*k}')
    for k in range(16):
        g(f'v_mov_b32 v{VC_ACC+k}, v{VC_ACC+16+k}')
    g.label(done)
    g('s_waitcnt lgkmcnt(0)')


def conv_final(g):
    Y, U, T = 44, 60, 68
    g(f's_xor_b32 s20, s{S_WP}, 1')
    g('s_lshl_b32 s20, s20, 12')
    g(f's_add_u32 s20, s20, {L_YX}')
    g('v_lshl_add_u32 v1, v0, 4, s20')
    for k in range(4):
        g(f'ds_read_b128 v[{Y+4*k}:{Y+4*k+3}], v1 offset:{1024*k}')
    g('v_and_b32 v10, 15, v0')
    g('v_lshrrev_b32 v11, 4, v0')
    g('v_lshlrev_b32 v10, 5, v10')
    g('v_lshl_add_u32 v10, v11, 3, v10')
    g(f's_mul_i32 s20, s{S_C}, {UL_SZ}')
    g(f's_lshl_b32 s21, s{S_PAR}, 11')
    g('s_add_u32 s20, s20, s21')
    g(f's_add_u32 s20, s20, {L_UL + 512}')
    g('v_add_u32 v2, s20, v10')
    for k in range(4):
        g(f'ds_read_b64 v[{U+2*k}:{U+2*k+1}], v2 offset:{512*k}')
    g(f's_lshl_b32 s20, s{S_WP}, 11')
    g(f's_add_u32 s20, s20, {L_YS}')
    g('v_add_u32 v3, s20, v10')
    g('v_lshl_add_u32 v4, v0, 4, s20')
    g('s_waitcnt lgkmcnt(4)')
    for k in range(16):
        g(f'v_add_f32 v{VC_ACC+k}, v{VC_ACC+k}, v{Y+k}')
    g('s_waitcnt lgkmcnt(0)')
    for k in range(4):
        t = T + 4 * k
        g(f'v_lshlrev_b32 v{t}, 16, v{U+2*k}')
        g(f'v_and_b32 v{t+1}, 0xffff0000, v{U+2*k}')
        g(f'v_lshlrev_b32 v{t+2}, 16, v{U+2*k+1}')
        g(f'v_and_b32 v{t+3}, 0xffff0000, v{U+2*k+1}')
    for k in range(16):
        g(f'v_fmac_f32 v{VC_ACC+k}, s{S_DSK}, v{T+k}')
    for k in range(4):
        d = VC_ACC + 4 * k
        g(f'v_cvt_pk_bf16_f32 v{U+2*k}, v{d}, v{d+1}')
        g(f'v_cvt_pk_bf16_f32 v{U+2*k+1}, v{d+2}, v{d+3}')
        g(f'ds_write_b64 v3, v[{U+2*k}:{U+2*k+1}] offset:{512*k}')
    for m in range(2):
        g(f'ds_read_b128 v[{Y+4*m}:{Y+4*m+3}], v4 offset:{1024*m}')
    g(f's_lshl_b32 s20, s68, 11')
    g(f's_lshl_b32 s21, s{S_WP}, 11')
    g('s_add_u32 s20, s20, s21')
    g(f's_add_u32 s20, s20, {WS_AT}')
    g('v_lshlrev_b32 v1, 4, v0')
    for m in range(2):
        g(f's_waitcnt lgkmcnt({1-m})')
        g(f'buffer_store_dwordx4 v[{Y+4*m}:{Y+4*m+3}], v1, {WS4}, s20 offen offset:{1024*m} sc1')


def flag_generic(g, wave, base, hi, lo, hi_shift):
    lab = g.uid('L_nf')
    g(f's_cmp_eq_u32 s{S_W}, {wave}')
    g(f's_cbranch_scc0 {lab}')
    g(f's_lshl_b32 s20, s{hi}, {hi_shift}')
    g(f's_add_u32 s20, s20, s{lo}')
    g('s_lshl_b32 s20, s20, 3')
    g(f's_add_u32 s20, s20, {base}')
    g.flag_store(20, 200)
    g.label(lab)


def ssm_phase2(g):
    ssm_expand(g)
    conv_setup(g)
    g('s_barrier')
    conv_reads(g, 0)
    conv_reads(g, 1)
    for n in range(4):
        g('s_waitcnt lgkmcnt(0)')
        conv_mfma(g, n, 0)
        g('s_barrier')
        conv_mfma(g, n, 1)
        if n + 2 < 4:
            conv_reads(g, n + 2)
        g('s_barrier')
    g.stamp('conv')
    conv_exchange(g)
    g('s_barrier')
    conv_final(g)
    g('s_barrier')
    g('s_waitcnt vmcnt(0)')
    g('s_barrier')
    flag_generic(g, 4, WS_FLAG2, S_FB, S_RB, 5)
    g('s_barrier')
    g('s_barrier')
    g('s_barrier')


def wout_dma(g):
    srd(g, SRD_B, P['wout'], NBYTES['wout'])
    g('v_lshrrev_b32 v14, 3, v0')
    g('v_bfe_u32 v15, v0, 4, 2')
    g('v_lshlrev_b32 v15, 1, v15')
    g('v_and_b32 v16, 7, v0')
    g('v_xor_b32 v15, v15, v16')
    g('v_lshlrev_b32 v15, 4, v15')
    g('v_lshl_add_u32 v1, v14, 10, v15')
    g(f's_mul_i32 s72, s{S_WP}, {28*8192}')
    g(f's_lshl_b32 s21, s{S_FB}, 7')
    g('s_add_u32 s72, s72, s21')
    g(f's_mul_i32 s73, s{S_WP}, {28*1024}')
    for m in range(28):
        g.dma(SRD_B, 1, 72, m * 8192, 73, L_WO + m * 1024)


def atile(g):
    g(f's_lshl_b32 s21, s{S_FB}, 8')
    g(f's_add_u32 s21, s21, {WS_FLAG2}')
    g('v_and_b32 v14, 31, v0')
    g('v_lshlrev_b32 v14, 3, v14')
    g.poll(lambda: g(f'buffer_load_dwordx2 v[16:17], v14, {WS4}, s21 offen sc1'), [(16, 17)], 18)
    g('v_lshrrev_b32 v14, 3, v0')
    g('v_and_b32 v15, 7, v0')
    g('v_lshlrev_b32 v16, 12, v14')
    g('v_lshl_add_u32 v16, v15, 4, v16')
    g(f's_lshl_b32 s20, s{S_FB}, 18')
    g(f's_lshl_b32 s21, s{S_WP}, 16')
    g('s_add_u32 s20, s20, s21')
    g(f's_lshl_b32 s21, s{S_RB}, 7')
    g('s_add_u32 s20, s20, s21')
    g(f's_add_u32 s20, s20, {WS_AT}')
    g(f'buffer_load_dwordx4 v[20:23], v16, {WS4}, s20 offen sc1')
    g('s_add_u32 s20, s20, 32768')
    g(f'buffer_load_dwordx4 v[24:27], v16, {WS4}, s20 offen sc1')
    g('v_bfe_u32 v17, v0, 4, 2')
    g('v_lshlrev_b32 v17, 1, v17')
    g('v_xor_b32 v17, v17, v15')
    g('v_lshlrev_b32 v17, 4, v17')
    g('v_lshl_add_u32 v17, v14, 7, v17')
    g(f's_lshl_b32 s20, s{S_WP}, 11')
    g(f's_add_u32 s20, s20, {L_AL}')
    g('v_add_u32 v17, s20, v17')
    g('s_waitcnt vmcnt(1)')
    g('ds_write_b128 v17, v[20:23]')
    g('s_waitcnt vmcnt(0)')
    g('ds_write_b128 v17, v[24:27] offset:1024')
    g('s_waitcnt lgkmcnt(0)')


def phase3(g):
    H, ACC, WF = 12, 68, 84
    VW, VH4, VH2 = 1, 5, 6
    steps = []
    for uu in (0, 2):
        for u in (uu, uu + 1):
            for p in range(3):
                steps.append((7 * u + 2 * p, 7 * u + 2 * p + 1))
        steps.append((7 * uu + 6, 7 * uu + 13))
    g('v_lshrrev_b32 v7, 4, v0')
    g('v_bfe_u32 v8, v0, 2, 2')
    g('v_and_b32 v9, 3, v0')
    g('v_lshl_add_u32 v10, v7, 2, v8')
    g('v_bfe_u32 v11, v10, 1, 2')
    g('v_lshlrev_b32 v10, 7, v10')
    g('v_lshl_add_u32 v10, v9, 3, v10')
    g(f's_mul_i32 s20, s{S_MH}, {28*2048}')
    for dt in range(4):
        g(f'v_xor_b32 v9, {dt}, v11')
        g(f'v_lshl_add_u32 v9, v9, 5, v10')
        g(f'v_add_u32 v{VW+dt}, s20, v9')
    g(f'v_xor_b32 v9, s{S_NQ}, v11')
    g('v_lshl_add_u32 v9, v9, 5, v10')
    g(f's_lshl_b32 s20, s{S_MH}, 12')
    g(f's_add_u32 s20, s20, {L_AL}')
    g('v_add_u32 v250, s20, v9')

    def w_reads(k):
        f = WF + (k % 10) * 16
        ta, tb = steps[k]
        for dt in range(4):
            g(f'ds_read_b64_tr_b16 v[{f+4*dt}:{f+4*dt+1}], v{VW+dt} offset:{L_WO + ta*2048}')
            g(f'ds_read_b64_tr_b16 v[{f+4*dt+2}:{f+4*dt+3}], v{VW+dt} offset:{L_WO + tb*2048}')
    for k in range(10):
        w_reads(k)
    g(f'v_lshlrev_b32 v{VH4}, 4, v0')
    g(f'v_lshlrev_b32 v{VH2}, 3, v0')
    g(f's_lshl_b32 s21, s{S_RB}, 3')
    g(f's_lshl_b32 s22, s{S_MH}, 2')
    g('s_add_u32 s22, s21, s22')
    g('s_lshl_b32 s21, s22, 3')
    g(f's_add_u32 s21, s21, {WS_FLAG3}')
    g('v_and_b32 v7, 3, v0')
    g('v_lshlrev_b32 v7, 3, v7')
    g('s_mul_i32 s72, s22, 14336')
    g(f's_mul_i32 s73, s{S_NQ}, 3584')
    g('s_add_u32 s72, s72, s73')
    g(f's_add_u32 s72, s72, {WS_H}')
    g.poll(lambda: g(f'buffer_load_dwordx2 v[8:9], v7, {WS4}, s21 offen sc1'), [(8, 9)], 244)
    g.stamp('f3')
    for uu in (0, 2):
        kb = 7 * (uu // 2)
        for du in range(2):
            u = uu + du
            g(f's_add_u32 s20, s72, {u*14336}')
            for p in range(3):
                r = H + 4 * (kb + 3 * du + p)
                g(f'buffer_load_dwordx4 v[{r}:{r+3}], v{VH4}, {WS4}, s20 offen offset:{1024*p} sc1')
        for du in range(2):
            u = uu + du
            r = H + 4 * (kb + 6) + 2 * du
            g(f's_add_u32 s20, s72, {u*14336}')
            g(f'buffer_load_dwordx2 v[{r}:{r+1}], v{VH2}, {WS4}, s20 offen offset:3072 sc1')
    g('v_and_b32 v7, 15, v0')
    g(f's_lshl_b32 s20, s{S_NQ}, 4')
    g('v_add_u32 v7, s20, v7')
    g('v_lshlrev_b32 v8, 2, v7')
    g(f'v_add_u32 v8, {L_GATE}, v8')
    g('ds_read_b32 v244, v8')
    for j in range(2):
        g(f'ds_read_b64_tr_b16 v[{246+2*j}:{247+2*j}], v250 offset:{2048*j}')
    srd(g, SRD_A, P['out'], NBYTES['out'])
    need = [k + 1 for k in range(6)] + [8] + [8 + k for k in range(1, 7)] + [16]
    for k in range(14):
        if k == 0 or k == 10:
            g(f's_waitcnt vmcnt({16 - need[k]}) lgkmcnt(0)')
        else:
            g(f's_waitcnt vmcnt({16 - need[k]})')
        f = WF + (k % 10) * 16
        h = H + 4 * k
        for dt in range(4):
            d = ACC + 4 * dt
            c = '0' if k == 0 else f'v[{d}:{d+3}]'
            g(f'v_mfma_f32_16x16x32_bf16 v[{d}:{d+3}], v[{f+4*dt}:{f+4*dt+3}], v[{h}:{h+3}], {c}')
        if k < 4:
            w_reads(k + 10)
    g.stamp('g3')
    lab = g.uid('L_rx'); done = g.uid('L_rxd')
    g(f's_lshl_b32 s20, s{S_W}, 11')
    g(f's_add_u32 s20, s20, {L_RX}')
    g(f'v_add_u32 v9, s20, v{VH4}')
    g(f's_xor_b32 s21, s{S_W}, 4')
    g('s_lshl_b32 s21, s21, 11')
    g(f's_add_u32 s21, s21, {L_RX}')
    g(f'v_add_u32 v10, s21, v{VH4}')
    g(f's_cmp_eq_u32 s{S_MH}, 1')
    g(f's_cbranch_scc1 {lab}')
    g(f'ds_write_b128 v9, v[{ACC+8}:{ACC+11}]')
    g(f'ds_write_b128 v9, v[{ACC+12}:{ACC+15}] offset:1024')
    g(f's_branch {done}')
    g.label(lab)
    g(f'ds_write_b128 v9, v[{ACC}:{ACC+3}]')
    g(f'ds_write_b128 v9, v[{ACC+4}:{ACC+7}] offset:1024')
    for k in range(8):
        g(f'v_mov_b32 v{ACC+k}, v{ACC+8+k}')
    g.label(done)
    A = 12
    for j in range(2):
        g(f'v_lshlrev_b32 v{A+4*j}, 16, v{246+2*j}')
        g(f'v_and_b32 v{A+4*j+1}, 0xffff0000, v{246+2*j}')
        g(f'v_lshlrev_b32 v{A+4*j+2}, 16, v{247+2*j}')
        g(f'v_and_b32 v{A+4*j+3}, 0xffff0000, v{247+2*j}')
    g('v_sub_f32 v245, 1.0, v244')
    g('v_cvt_pk_bf16_f32 v245, v245, v245')
    g('v_lshlrev_b32 v245, 16, v245')
    for k in range(8):
        g(f'v_mul_f32 v{A+k}, v{A+k}, v244')
    g(f's_lshl_b32 s20, s{S_RB}, 16')
    g(f's_lshl_b32 s21, s{S_FB}, 7')
    g('s_add_u32 s20, s20, s21')
    g(f's_lshl_b32 s21, s{S_MH}, 6')
    g('s_add_u32 s20, s20, s21')
    g('v_lshlrev_b32 v7, 10, v7')
    g('v_bfe_u32 v8, v0, 4, 1')
    g('v_lshl_add_u32 v7, v8, 5, v7')
    g('v_lshrrev_b32 v8, 5, v0')
    g('v_lshl_add_u32 v7, v8, 4, v7')
    g('s_waitcnt lgkmcnt(0)')
    g('s_barrier')
    g('ds_read_b128 v[20:23], v10')
    g('ds_read_b128 v[24:27], v10 offset:1024')
    g('s_waitcnt lgkmcnt(0)')
    for k in range(8):
        g(f'v_add_f32 v{20+k}, v{20+k}, v{ACC+k}')
    for k in range(8):
        g(f'v_fmac_f32 v{A+k}, v245, v{20+k}')
    for j in range(2):
        g(f'v_cvt_pk_bf16_f32 v{28+2*j}, v{A+4*j}, v{A+4*j+1}')
        g(f'v_cvt_pk_bf16_f32 v{29+2*j}, v{A+4*j+2}, v{A+4*j+3}')
    g('v_permlane16_swap_b32 v28, v30')
    g('v_permlane16_swap_b32 v29, v31')
    g(f'buffer_store_dwordx4 v[28:31], v7, s[{SRD_A}:{SRD_A+3}], s20 offen')
    g.stamp('end')


def rest(g, upto):
    if upto == 'p1':
        g('s_waitcnt vmcnt(0)')
        g('s_barrier')
        flag1_store(g)
        z1_epilogue(g)
        dump_lds(g, L_Z1, 16384, WS_DBG, 16384)
        return
    g(f's_cmp_ge_u32 s{S_W}, 4')
    g('s_cbranch_scc1 L_p2a_ssm')
    gemm2_setup_dma(g)
    g('s_waitcnt vmcnt(16)')
    g('s_branch L_p2a')
    g.label('L_p2a_ssm')
    g('s_waitcnt vmcnt(0)')
    g.label('L_p2a')
    g('s_barrier')
    g(f's_cmp_eq_u32 s{S_FB}, 7')
    g('s_cbranch_scc1 L_nof1')
    flag1_store(g)
    g.label('L_nof1')
    g.stamp('pub1')
    z1_epilogue(g)
    g(f's_cmp_ge_u32 s{S_W}, 4')
    g('s_cbranch_scc1 L_ssm')
    gemm2_setup(g)
    flag1_poll(g)
    g('s_waitcnt vmcnt(12) lgkmcnt(0)')
    g.stamp('q0pre')
    g('s_barrier')
    g.stamp('q0')
    gemm2(g)
    g('s_barrier')
    flag_generic(g, 0, WS_FLAG3, S_RB, S_FB, 3)
    g.stamp('pub3')
    g('s_branch L_x2')
    g.label('L_ssm')
    kgen(g)
    g('s_waitcnt lgkmcnt(0)')
    g.stamp('q0pre')
    g('s_barrier')
    g.stamp('q0')
    ssm_phase2(g)
    wout_dma(g)
    g('s_barrier')
    atile(g)
    g.label('L_x2')
    g('s_barrier')
    g.stamp('x2')
    phase3(g)
```

```python
import re

TRANS = ('v_exp_f32', 'v_log_f32', 'v_rcp_f32', 'v_rsq_f32', 'v_sqrt_f32', 'v_sin_f32', 'v_cos_f32', 'v_rcp_iflag_f32')
REG = re.compile(r'(?<![\w.])(-?\|?)([vsa])(\d+|\[(\d+):(\d+)\])')


def regs_of(tok):
    out = set()
    tok = tok.strip()
    if tok.startswith('vcc'):
        return {'vcc'}
    if tok.startswith('exec'):
        return {'exec'}
    if tok == 'm0':
        return {'m0'}
    for m in REG.finditer(tok):
        k = m.group(2)
        if m.group(4) is not None:
            out |= {f'{k}{i}' for i in range(int(m.group(4)), int(m.group(5)) + 1)}
        else:
            out.add(f'{k}{m.group(3)}')
    return out


class Ins:
    def __init__(self, text):
        self.text = text
        t = text.split(';')[0].strip()
        self.label = t.endswith(':')
        self.empty = (t == '' or t.startswith('.'))
        self.w = set(); self.r = set(); self.kind = 'other'; self.states = 1
        self.passes = 0; self.op = ''; self.cset = set(); self.abset = set(); self.dpp = False; self.storedata = set()
        if self.label or self.empty:
            self.states = 0
            return
        parts = t.split(None, 1)
        op = parts[0]; self.op = op
        rest = parts[1] if len(parts) > 1 else ''
        ops = [x.strip() for x in rest.split(',')] if rest else []
        if ops:
            last = ops[-1].split()
            ops[-1] = last[0] if last else ''
            self.mods = ' '.join(last[1:])
        else:
            self.mods = ''
        R = [regs_of(o) for o in ops]
        allr = set().union(*R) if R else set()
        if op == 's_nop':
            self.kind = 'nop'; self.states = int(ops[0], 0) + 1
        elif op.startswith('v_mfma'):
            self.kind = 'mfma'
            self.passes = 8 if '32x32x16' in op else 4
            self.w = R[0]; self.abset = R[1] | R[2]; self.cset = R[3] if len(R) > 3 else set()
            self.r = self.abset | self.cset
        elif op.startswith('v_cmp'):
            self.kind = 'valu'; self.w = R[0]; self.r = set().union(*R[1:])
            if op.startswith('v_cmpx'):
                self.w = self.w | {'exec'}
        elif op.startswith('v_readfirstlane') or op.startswith('v_readlane'):
            self.kind = 'valu'; self.w = R[0]; self.r = set().union(*R[1:])
        elif op.startswith('v_permlane'):
            self.kind = 'valu'; self.w = allr; self.r = allr
        elif op.startswith(('v_add_co', 'v_sub_co', 'v_addc_co', 'v_subb_co')):
            self.kind = 'valu'; self.w = R[0] | R[1]; self.r = set().union(*R[2:])
        elif op.startswith('v_'):
            self.kind = 'valu'; self.w = R[0]; self.r = set().union(*R[1:]) if len(R) > 1 else set()
            if op.startswith(('v_fmac', 'v_mac', 'v_writelane', 'v_dot2c')) or '_dpp' in op or 'd16' in op:
                self.r = self.r | R[0]
            self.dpp = '_dpp' in op
        elif op.startswith('ds_'):
            self.kind = 'ds'
            if op.startswith(('ds_read', 'ds_bpermute', 'ds_permute', 'ds_swizzle')):
                self.w = R[0]; self.r = set().union(*R[1:])
            else:
                self.r = allr
        elif op.startswith(('buffer_', 'global_')):
            self.kind = 'vmem'
            lds = ' lds' in (' ' + self.mods) or '_lds_' in op
            if 'load' in op and not lds:
                self.w = R[0]; self.r = set().union(*R[1:])
            else:
                self.r = allr
                if lds:
                    self.kind = 'dma'
                if 'store' in op and ('x3' in op or 'x4' in op):
                    self.storedata = R[0] if op.startswith('buffer_') else R[1]
        elif op.startswith('s_'):
            self.kind = 'salu'
            if op.startswith(('s_cmp', 's_waitcnt', 's_barrier', 's_branch', 's_cbranch', 's_endpgm', 's_sleep', 's_setprio', 's_bitcmp')):
                self.r = allr
            else:
                self.w = R[0] if R else set(); self.r = set().union(*R[1:]) if len(R) > 1 else set()
                if 'saveexec' in op:
                    self.w = self.w | {'exec'}


def need(p, c):
    n = 0
    vw = {x for x in p.w if x[0] in 'va' and x != 'vcc'}
    sw = {x for x in p.w if x[0] == 's' or x == 'vcc'}
    if p.kind == 'valu':
        if c.kind == 'mfma' and vw & c.r:
            n = max(n, 2)
        if c.kind == 'valu':
            if c.dpp and vw & c.r:
                n = max(n, 2)
            if c.op.startswith('v_permlane') and vw & c.r:
                n = max(n, 2)
            if c.op.startswith(('v_readfirstlane', 'v_readlane')) and vw & c.r:
                n = max(n, 1)
            if p.op.startswith(TRANS) and not c.op.startswith(TRANS) and vw & c.r:
                n = max(n, 1)
            if sw & c.r:
                n = max(n, 4 if c.op.startswith(('v_readlane', 'v_writelane')) else 2)
            if c.op.startswith('v_cndmask') and 'vcc' in sw:
                n = max(n, 2)
            if 'exec' in p.w:
                n = max(n, 5 if c.dpp else 4)
        if c.kind == 'mfma' and 'exec' in p.w:
            n = max(n, 4)
        if c.kind in ('vmem', 'dma') and sw & c.r:
            n = max(n, 5)
        if c.kind == 'salu' and sw & c.r:
            n = max(n, 1)
    if p.kind == 'mfma':
        big = p.passes == 8
        if c.kind == 'mfma':
            if p.w & c.abset:
                n = max(n, 12 if big else 8)
            if p.w & c.cset and not (p.w == c.cset and p.passes == c.passes):
                n = max(n, 10 if big else 6)
        elif c.kind in ('valu', 'ds', 'vmem', 'dma'):
            if p.w & (c.r | c.w):
                n = max(n, 12 if big else 8)
            if c.kind == 'valu' and p.cset & c.w:
                n = max(n, 7 if big else 3)
    if p.kind == 'salu' and 'm0' in p.w and c.kind == 'dma':
        n = max(n, 1)
    if p.storedata:
        if c.kind == 'valu' and p.storedata & c.w:
            n = max(n, 2)
        elif p.storedata & c.w:
            n = max(n, 1)
    return n


def fix(lines):
    ins = [Ins(t) for t in lines]
    added = 0
    for _ in range(400):
        labels = {x.text.strip()[:-1]: i for i, x in enumerate(ins) if x.label}
        srcs = {}
        for i, x in enumerate(ins):
            if x.op.startswith(('s_branch', 's_cbranch')):
                tgt = x.text.split(';')[0].split()[-1]
                srcs.setdefault(labels[tgt], []).append(i)

        def preds(i):
            out = []
            if i > 0 and ins[i - 1].op not in ('s_branch', 's_endpgm'):
                out.append(i - 1)
            out += srcs.get(i, [])
            return out
        pads = {}
        for i, c in enumerate(ins):
            if c.label or c.empty or c.kind == 'nop':
                continue
            pad = 0
            seen = {}
            stack = [(p, 0) for p in preds(i)]
            while stack:
                j, dist = stack.pop()
                if dist >= 13 or seen.get(j, 99) <= dist:
                    continue
                seen[j] = dist
                p = ins[j]
                if p.states and p.kind != 'nop':
                    pad = max(pad, need(p, c) - dist)
                for q in preds(j):
                    stack.append((q, dist + p.states))
            if pad > 0:
                pads[i] = pad
        if not pads:
            break
        first = True
        out = []
        since = 99
        for i, c in enumerate(ins):
            if i in pads and since >= 13:
                out.append(Ins(f'    s_nop {pads[i] - 1}')); added += pads[i]; since = 0
            out.append(c); since += c.states
        ins = out
        if _ == 3:
            pass
    return [x.text for x in ins], added


def check(lines):
    fixed, added = fix(lines)
    return added
```

```python
import sys, struct
from asmlib import *
import hazard

NAME = 'gated_mix__ssm_conv_s4d__mixer_gmlp__prompt_kernel'

WS_FLAG1, WS_FLAG2, WS_FLAG3 = 0x1000, 0x2000, 0x3000
WS_STATS = 0x10000
WS_Z2N = 0x100000
WS_U = 0x500000
WS_H = 0x700000
WS_AT = 0xB00000
WS_DBG = 0x1000000
WS_STAMP = 128 << 20

L_X = 0
L_RING1 = 65536
L_RING2 = 81920
L_Z1 = 147456
L_SC = L_Z1
L_GW = 161792
L_GATE = 162816
L_MR = 163072
L_SCR = 0
SCR_W = 53 * 272
L_R = 128
R_COPY = 4160
R_CH = 2 * R_COPY
L_YX = 16896
L_YS = 33280
L_T = 57664
T_SZ = 2608
L_UL = 68096
UL_SZ = 4608
L_WO = 0
L_AL = 114688
L_RX = 122880
LDS_BYTES = 163840

S_W, S_RB, S_FB, S_TAG, S_TAG2 = 3, 4, 5, 6, 7
SRD_A, SRD_B, SRD_WS = 8, 12, 16
P = {k: 24 + v // 4 for k, v in KARG.items()}
S_EPOCH, S_LDT, S_DSK, S_MH, S_NQ = 56, 57, 58, 59, 60
S_XM0, S_XSO, S_WM0, S_WC2, S_WC1, S_SPIN = 61, 62, 63, 64, 65, 66
S_T0, S_T1, S_T2, S_T3 = 20, 21, 22, 23
S_EX = 70
S_STAMP = 80
SPIN_LIMIT = 1 << 16


def fbits(x):
    return '0x%08x' % struct.unpack('<I', struct.pack('<f', x))[0]


class Gen(Asm):
    def __init__(self, opt):
        super().__init__()
        self.opt = opt
        self.nstamp = 0

    def stamp(self, name):
        if not self.opt.get('stamps'):
            return
        k = self.opt.setdefault('stamp_names', [])
        if name not in k:
            k.append(name)
        i = k.index(name)
        assert i < 20
        self(f's_memrealtime s[100:101]')
        self('s_waitcnt lgkmcnt(0)')
        self(f's_mov_b32 s{S_STAMP + i}, s100')

    def dma(self, srd, voff, sbase, sconst, mbase, mconst, mods=''):
        if mbase is None:
            self(f's_mov_b32 m0, {mconst}')
        else:
            self(f's_add_u32 m0, s{mbase}, {mconst}')
        self(f's_add_u32 s{S_T0}, s{sbase}, {sconst}')
        self(f'buffer_load_dwordx4 v{voff}, s[{srd}:{srd+3}], s{S_T0} offen lds {mods}')

    def swz(self, dst, row, tmp):
        self(f'v_bfe_u32 v{dst}, v{row}, 1, 3')
        self(f'v_lshrrev_b32 v{tmp}, 3, v{row}')
        self(f'v_and_b32 v{tmp}, 2, v{tmp}')
        self(f'v_xor_b32 v{dst}, v{dst}, v{tmp}')

    def one_lane(self):
        self('s_mov_b64 exec, 1')

    def all_lanes(self):
        self('s_mov_b64 exec, -1')

    def flag_store(self, soff_sgpr, vt):
        self(f'v_mov_b32 v{vt}, s{S_TAG}')
        self(f'v_mov_b32 v{vt+1}, s{S_TAG2}')
        self(f'v_mov_b32 v{vt+2}, 0')
        self.one_lane()
        self(f'buffer_store_dwordx2 v[{vt}:{vt+1}], v{vt+2}, s[{SRD_WS}:{SRD_WS+3}], s{soff_sgpr} offen sc1')
        self.all_lanes()

    def poll(self, loads, tagpairs, vt):
        top = self.uid('L_poll'); done = self.uid('L_polled')
        self(f's_mov_b32 s{S_SPIN}, 0')
        self.label(top)
        loads()
        self('s_waitcnt vmcnt(0)')
        first = True
        for (ra, rb_) in tagpairs:
            if first:
                self(f'v_xor_b32 v{vt}, s{S_TAG}, v{ra}')
                self(f'v_xor_b32 v{vt+1}, s{S_TAG2}, v{rb_}')
                self(f'v_or_b32 v{vt}, v{vt}, v{vt+1}')
                first = False
            else:
                self(f'v_xor_b32 v{vt+1}, s{S_TAG}, v{ra}')
                self(f'v_xor_b32 v{vt+2}, s{S_TAG2}, v{rb_}')
                self(f'v_or3_b32 v{vt}, v{vt}, v{vt+1}, v{vt+2}')
        self(f'v_cmp_ne_u32 vcc, 0, v{vt}')
        self(f's_add_u32 s{S_SPIN}, s{S_SPIN}, 1')
        self('s_cmp_eq_u64 vcc, 0')
        self(f's_cbranch_scc1 {done}')
        self(f's_cmp_lt_u32 s{S_SPIN}, {SPIN_LIMIT}')
        self(f's_cbranch_scc0 {done}')
        self('s_sleep 1')
        self(f's_branch {top}')
        self.label(done)

    def gelu(self, regs, vc1, tmp):
        c1 = -2.0 * 0.7978845608028654 * 1.4426950408889634
        c2 = c1 * 0.044715
        n = len(regs)
        for k, x in enumerate(regs):
            self(f'v_mul_f32 v{tmp+k}, v{x}, v{x}')
        for k, x in enumerate(regs):
            self(f'v_fmamk_f32 v{tmp+k}, v{tmp+k}, {fbits(c2)}, v{vc1}')
        for k, x in enumerate(regs):
            self(f'v_mul_f32 v{tmp+k}, v{tmp+k}, v{x}')
        for k, x in enumerate(regs):
            self(f'v_exp_f32 v{tmp+k}, v{tmp+k}')
        for k, x in enumerate(regs):
            self(f'v_add_f32 v{tmp+k}, 1.0, v{tmp+k}')
        for k, x in enumerate(regs):
            self(f'v_rcp_f32 v{tmp+k}, v{tmp+k}')
        for k, x in enumerate(regs):
            self(f'v_mul_f32 v{x}, v{x}, v{tmp+k}')


V_XD, V_WD = 1, 2
V_A = 4
V_B = 8
V_C1 = 12
V_GW = 13
V_T = 14
V_Z2 = 20
V_Z1 = 36
V_FR = 60
V_TMP = 92
V_PAR = 240


def prologue(g):
    g('s_cmp_ge_u32 s2, 256')
    g('s_cbranch_scc1 L_end')
    g('s_load_dwordx16 s[24:39], s[0:1], 0')
    g('s_load_dwordx16 s[40:55], s[0:1], 64')
    g.stamp('start')
    g('v_lshrrev_b32 v1, 6, v0')
    g('v_and_b32 v0, 63, v0')
    g('v_mov_b32 v3, 0')
    g(f'v_readfirstlane_b32 s{S_W}, v1')
    g('s_and_b32 s20, s2, 7')
    g('s_lshr_b32 s21, s2, 3')
    g('s_lshr_b32 s22, s20, 1')
    g('s_lshl_b32 s22, s22, 3')
    g('s_lshr_b32 s23, s21, 2')
    g(f's_add_u32 s{S_RB}, s22, s23')
    g('s_and_b32 s22, s20, 1')
    g('s_lshl_b32 s22, s22, 2')
    g('s_and_b32 s23, s21, 3')
    g(f's_add_u32 s{S_FB}, s22, s23')
    g(f's_lshr_b32 s{S_MH}, s{S_W}, 2')
    g(f's_and_b32 s{S_NQ}, s{S_W}, 3')
    g(f's_lshl_b32 s{S_XM0}, s{S_W}, 10')
    g(f's_lshl_b32 s{S_XSO}, s{S_RB}, 16')
    g(f's_lshl_b32 s{S_WM0}, s{S_W}, 11')
    g(f's_lshl_b32 s{S_WC2}, s{S_FB}, 8')
    g(f's_add_u32 s{S_WC2}, s{S_WC2}, 1792')
    g(f's_mul_i32 s{S_WC1}, s{S_FB}, 224')
    g(f's_and_b32 s20, s{S_FB}, 3')
    g('s_cmp_eq_u32 s20, 3')
    g('s_cselect_b32 s67, 1, 0')
    g('s_lshl_b32 s20, s67, 5')
    g(f's_sub_u32 s{S_WC1}, s{S_WC1}, s20')
    g(f'v_lshrrev_b32 v14, 3, v0')
    g(f's_lshl_b32 s20, s{S_W}, 3')
    g(f'v_add_u32 v14, s20, v14')
    g.swz(15, 14, 16)
    g('v_and_b32 v16, 7, v0')
    g('v_xor_b32 v15, v15, v16')
    g('v_lshlrev_b32 v15, 4, v15')
    g(f'v_lshl_add_u32 v{V_XD}, v14, 10, v15')
    g('v_lshrrev_b32 v14, 4, v0')
    g(f's_and_b32 s21, s{S_W}, 1')
    g('s_lshl_b32 s21, s21, 2')
    g('v_or_b32 v15, s21, v14')
    g('v_lshlrev_b32 v15, 1, v15')
    g('v_and_b32 v16, 15, v0')
    g('v_xor_b32 v15, v15, v16')
    g('v_lshlrev_b32 v15, 4, v15')
    g('v_add_u32 v14, s20, v14')
    g('v_mul_u32_u24 v14, 3584, v14')
    g(f'v_add_u32 v{V_WD}, v14, v15')
    g('s_waitcnt lgkmcnt(0)')
    srd(g, SRD_A, P['u'], NBYTES['u'])
    srd(g, SRD_B, P['win'], NBYTES['win'])
    srd(g, SRD_WS, P['ws'], NBYTES['ws'])
    g(f's_load_dword s{S_EPOCH}, s[{P["ws"]}:{P["ws"]+1}], 0')
    g(f's_lshl_b32 s20, s{S_FB}, 7')
    g(f's_lshl_b32 s21, s{S_RB}, 2')
    g('s_add_u32 s68, s20, s21')
    g(f's_load_dword s{S_LDT}, s[{P["logdt"]}:{P["logdt"]+1}], s68')
    g(f's_load_dword s{S_DSK}, s[{P["Dskip"]}:{P["Dskip"]+1}], s68')


def stage_loads(g, j, with_x=True):
    if j < 8 and with_x:
        g.dma(SRD_A, V_XD, S_XSO, 128 * j, S_XM0, L_X + j * 8192)
    col = S_WC2 if j < 8 else S_WC1
    jj = j % 8
    for i in range(2):
        g.dma(SRD_B, V_WD, col, (64 * jj + 4 * i) * 3584, S_WM0, L_RING1 + (j % 5) * 16384 + i * 1024)


def addr_A(g, natural):
    g('v_and_b32 v14, 15, v0')
    g('v_lshrrev_b32 v15, 4, v0')
    g(f's_lshl_b32 s20, s{S_MH}, 5')
    for ab in range(2):
        if natural:
            g(f'v_add_u32 v16, s20, v14')
            if ab:
                g('v_add_u32 v16, 16, v16')
        else:
            g('v_lshrrev_b32 v16, 2, v14')
            g('v_lshlrev_b32 v16, 3, v16')
            g('v_and_b32 v17, 3, v14')
            g('v_add3_u32 v16, v16, v17, s20')
            if ab:
                g('v_add_u32 v16, 4, v16')
        g.swz(17, 16, 18)
        g('v_xor_b32 v17, v17, v15')
        g('v_lshlrev_b32 v17, 4, v17')
        g(f'v_lshl_add_u32 v{V_A+2*ab}, v16, 7, v17')
        g(f'v_xor_b32 v{V_A+2*ab+1}, 64, v{V_A+2*ab}')


def addr_B(g, with_doff):
    g('v_lshrrev_b32 v14, 4, v0')
    g('v_bfe_u32 v15, v0, 2, 2')
    g('v_and_b32 v16, 3, v0')
    g('v_lshl_add_u32 v17, v14, 3, v15')
    g('v_lshlrev_b32 v17, 8, v17')
    g('v_lshl_add_u32 v17, v16, 3, v17')
    g(f'v_add_u32 v17, {L_RING1}, v17')
    g('v_and_b32 v14, 1, v14')
    g('v_lshl_or_b32 v15, v14, 2, v15')
    g(f's_lshl_b32 s20, s{S_NQ}, 1')
    if with_doff:
        g('s_add_u32 s20, s20, s67')
    for jt in range(2):
        if jt:
            g('s_add_u32 s20, s20, 1')
            g('s_and_b32 s20, s20, 7')
        g('v_xor_b32 v18, s20, v15')
        g(f'v_lshl_add_u32 v{V_B+jt}, v18, 5, v17')
        g(f'v_add_u32 v{V_B+2+jt}, 65536, v{V_B+jt}')


def stage_compute(g, j):
    z2 = j < 8
    jj = j % 8
    slot = j % 5
    acc = V_Z2 if z2 else V_Z1
    for kk in range(2):
        f = V_FR + 16 * kk
        for ab in range(2):
            g(f'ds_read_b128 v[{f+4*ab}:{f+4*ab+3}], v{V_A+2*ab+kk} offset:{jj*8192}')
        for jt in range(2):
            base = V_B + jt + (2 if slot == 4 else 0)
            off = (slot % 4) * 16384 + kk * 8192
            if jt == 1 and not z2:
                lab = g.uid('L_gw'); done = g.uid('L_gwd')
                g(f's_cmp_eq_u32 s{S_NQ}, 3')
                g(f's_cbranch_scc1 {lab}')
            for hh in range(2):
                r = f + 8 + 4 * jt + 2 * hh
                g(f'ds_read_b64_tr_b16 v[{r}:{r+1}], v{base} offset:{off + hh*1024}')
            if jt == 1 and not z2:
                g(f's_branch {done}')
                g.label(lab)
                g(f'ds_read_b128 v[{f+12}:{f+15}], v{V_GW} offset:{128*jj + 64*kk}')
                g.label(done)
    for kk in range(2):
        f = V_FR + 16 * kk
        g(f's_waitcnt lgkmcnt({(6 if z2 else 5) if kk == 0 else 0})')
        for ab in range(2):
            for jt in range(2):
                d = acc + 8 * ab + 4 * jt
                c = '0' if (jj == 0 and kk == 0) else f'v[{d}:{d+3}]'
                xa = f'v[{f+4*ab}:{f+4*ab+3}]'
                wb = f'v[{f+8+4*jt}:{f+8+4*jt+3}]'
                if z2:
                    g(f'v_mfma_f32_16x16x32_bf16 v[{d}:{d+3}], {xa}, {wb}, {c}')
                else:
                    g(f'v_mfma_f32_16x16x32_bf16 v[{d}:{d+3}], {wb}, {xa}, {c}')


def outstanding_after(j):
    return sum((3 if s < 8 else 2) for s in range(j + 1, min(j + 4, 16)))


def z2_epilogue(g):
    zs = list(range(V_Z2, V_Z2 + 16))
    g.gelu(zs, V_C1, V_TMP)
    V = V_TMP
    for ab in range(2):
        for r in range(4):
            ri = 4 * ab + r
            x0 = V_Z2 + 8 * ab + r; x1 = x0 + 4
            g(f'v_add_f32 v{V+2*ri}, v{x0}, v{x1}')
            g(f'v_mul_f32 v{V+2*ri+1}, v{x0}, v{x0}')
    for ab in range(2):
        for r in range(4):
            ri = 4 * ab + r
            x1 = V_Z2 + 8 * ab + r + 4
            g(f'v_fmac_f32 v{V+2*ri+1}, v{x1}, v{x1}')
    for k in range(8):
        g(f'v_add_f32_dpp v{V+k}, v{V+k}, v{V+k} row_ror:8 row_mask:0xf bank_mask:0x3')
    for k in range(8):
        g(f'v_add_f32_dpp v{V+k}, v{V+k+8}, v{V+k+8} row_ror:8 row_mask:0xf bank_mask:0xc')
    for k in range(4):
        g(f'v_add_f32_dpp v{V+k}, v{V+k}, v{V+k} row_half_mirror row_mask:0xf bank_mask:0x5')
    for k in range(4):
        g(f'v_add_f32_dpp v{V+k}, v{V+k+4}, v{V+k+4} row_half_mirror row_mask:0xf bank_mask:0xa')
    for k in range(4):
        g(f'v_add_f32_dpp v{V+k}, v{V+k}, v{V+k} quad_perm:[1,0,3,2] row_mask:0xf bank_mask:0xf')
    for k in range(4):
        g(f'v_add_f32_dpp v{V+k}, v{V+k}, v{V+k} quad_perm:[2,3,0,1] row_mask:0xf bank_mask:0xf')
    g('v_lshrrev_b32 v14, 2, v0')
    g('v_lshlrev_b32 v14, 4, v14')
    g(f's_lshl_b32 s20, s{S_MH}, 8')
    g(f's_lshl_b32 s21, s{S_NQ}, 9')
    g('s_add_u32 s20, s20, s21')
    g(f's_add_u32 s20, s20, {L_SC}')
    g('v_add_u32 v14, s20, v14')
    g(f's_mov_b32 s{S_EX}, 0x11111111')
    g(f's_mov_b32 s{S_EX+1}, 0x11111111')
    g(f's_mov_b64 exec, s[{S_EX}:{S_EX+1}]')
    g(f'ds_write_b128 v14, v[{V}:{V+3}]')
    g.all_lanes()
    g('s_waitcnt lgkmcnt(0)')


def make_tags(g):
    g(f's_mul_i32 s{S_TAG}, s{S_EPOCH}, 0x9E3779B1')
    g(f's_add_u32 s{S_TAG}, s{S_TAG}, 0x7F4A7C15')
    g(f's_not_b32 s{S_TAG2}, s{S_TAG}')


def stats_publish(g):
    V = V_TMP
    g('v_lshlrev_b32 v14, 3, v0')
    g(f'v_add_u32 v14, {L_SC}, v14')
    for q in range(4):
        g(f'ds_read_b64 v[{V+2*q}:{V+2*q+1}], v14 offset:{512*q}')
    g(f's_mul_i32 s20, s{S_RB}, 7')
    g(f's_add_u32 s20, s20, s{S_FB}')
    g('s_lshl_b32 s20, s20, 10')
    g(f's_add_u32 s20, s20, {WS_STATS}')
    g('v_lshlrev_b32 v14, 4, v0')
    g(f'v_mov_b32 v{V+9}, s{S_TAG}')
    g(f'v_mov_b32 v{V+11}, s{S_TAG2}')
    g('s_waitcnt lgkmcnt(0)')
    g(f'v_add_f32 v{V}, v{V}, v{V+2}')
    g(f'v_add_f32 v{V+4}, v{V+4}, v{V+6}')
    g(f'v_add_f32 v{V+1}, v{V+1}, v{V+3}')
    g(f'v_add_f32 v{V+5}, v{V+5}, v{V+7}')
    g(f'v_add_f32 v{V+8}, v{V}, v{V+4}')
    g(f'v_add_f32 v{V+10}, v{V+1}, v{V+5}')
    g(f'buffer_store_dwordx4 v[{V+8}:{V+11}], v14, s[{SRD_WS}:{SRD_WS+3}], s20 offen sc1')


def stats_collect(g):
    V = V_TMP
    g(f's_mul_i32 s21, s{S_RB}, 7168')
    g(f's_add_u32 s21, s21, {WS_STATS}')
    g('v_lshlrev_b32 v14, 4, v0')
    g('v_add_u32 v15, 4096, v14')

    def loads():
        for c in range(7):
            g(f'buffer_load_dwordx4 v[{V+4*c}:{V+4*c+3}], v{14 + c//4}, s[{SRD_WS}:{SRD_WS+3}], s21 offen offset:{(c%4)*1024} sc1')
    g.poll(loads, [(V + 4*c + 1, V + 4*c + 3) for c in range(7)], 16)
    for c in range(1, 7):
        g(f'v_add_f32 v{V}, v{V}, v{V+4*c}')
        g(f'v_add_f32 v{V+2}, v{V+2}, v{V+4*c+2}')
    g(f'v_mul_f32 v{V}, {fbits(1/896)}, v{V}')
    g(f'v_mul_f32 v{V+2}, {fbits(1/896)}, v{V+2}')
    g(f'v_fma_f32 v{V+2}, -v{V}, v{V}, v{V+2}')
    g(f'v_max_f32 v{V+2}, 0, v{V+2}')
    g(f'v_add_f32 v{V+2}, {fbits(1e-5)}, v{V+2}')
    g(f'v_rsq_f32 v{V+4}, v{V+2}')
    g('v_lshlrev_b32 v14, 3, v0')
    g(f'v_add_u32 v14, {L_MR}, v14')
    g(f'v_mul_f32 v{V+5}, -v{V}, v{V+4}')
    g(f'ds_write_b64 v14, v[{V+4}:{V+5}]')
    g('s_waitcnt lgkmcnt(0)')


def normalise_store(g):
    V = V_TMP
    g('v_lshrrev_b32 v14, 4, v0')
    g('v_lshlrev_b32 v14, 6, v14')
    g(f's_lshl_b32 s20, s{S_MH}, 8')
    g(f's_add_u32 s20, s20, {L_MR}')
    g('v_add_u32 v14, s20, v14')
    for q in range(4):
        g(f'ds_read_b128 v[{V+4*q}:{V+4*q+3}], v14 offset:{16*q}')
    g(f's_lshl_b32 s20, s{S_FB}, 3')
    g(f's_lshl_b32 s21, s{S_NQ}, 1')
    g('s_add_u32 s20, s20, s21')
    g(f's_lshl_b32 s21, s{S_RB}, 1')
    g(f's_add_u32 s21, s21, s{S_MH}')
    g('s_mul_i32 s21, s21, 7168')
    g(f's_add_u32 s21, s21, {WS_Z2N}')
    for jt in range(2):
        if jt:
            g('s_add_u32 s20, s20, 1')
        g('s_mul_i32 s22, s20, 37')
        g('s_lshr_b32 s22, s22, 8')
        g('s_mul_i32 s23, s22, 7')
        g('s_sub_u32 s23, s20, s23')
        g('s_lshl_b32 s23, s23, 10')
        g('s_mul_i32 s22, s22, 458752')
        g('s_add_u32 s22, s22, s23')
        g(f's_add_u32 s{72+jt}, s22, s21')
    g('v_lshlrev_b32 v14, 4, v0')
    g('s_waitcnt lgkmcnt(0)')
    for ab in range(2):
        for jt in range(2):
            for r in range(4):
                x = V_Z2 + 8 * ab + 4 * jt + r
                ri = 4 * ab + r
                g(f'v_fma_f32 v{x}, v{x}, v{V+2*ri}, v{V+2*ri+1}')
    for jt in range(2):
        o = V + 16 + 4 * jt
        for ab in range(2):
            x = V_Z2 + 8 * ab + 4 * jt
            g(f'v_cvt_pk_bf16_f32 v{o+2*ab}, v{x}, v{x+1}')
            g(f'v_cvt_pk_bf16_f32 v{o+2*ab+1}, v{x+2}, v{x+3}')
        g(f'buffer_store_dwordx4 v[{o}:{o+3}], v14, s[{SRD_WS}:{SRD_WS+3}], s{72+jt} offen sc1')


def u_transpose(g):
    V = V_TMP
    g('v_lshrrev_b32 v14, 4, v0')
    g('v_and_b32 v15, 1, v14')
    g('v_lshrrev_b32 v14, 1, v14')
    g('v_bfe_u32 v16, v0, 2, 2')
    g('v_and_b32 v17, 3, v0')
    g('v_lshlrev_b32 v18, 5, v14')
    g('v_lshl_add_u32 v18, v17, 3, v18')
    g('v_add_u32 v18, v18, v16')
    g(f's_lshl_b32 s20, s{S_W}, 13')
    for hh in range(2):
        if hh:
            g('v_add_u32 v18, 4, v18')
        g.swz(V + 40 + hh, 18, 19)
        g(f'v_lshlrev_b32 v{V+40+hh}, 4, v{V+40+hh}')
        g(f'v_lshlrev_b32 v19, 7, v18')
        g(f'v_lshl_add_u32 v19, v15, 3, v19')
        g(f'v_add_u32 v{V+42+hh}, s20, v19')
    g('v_lshlrev_b32 v18, 14, v15')
    g('v_lshl_add_u32 v18, v14, 8, v18')
    g('v_lshl_add_u32 v18, v16, 6, v18')
    g('v_lshl_add_u32 v18, v17, 4, v18')
    for n in range(8):
        for hh in range(2):
            g(f'v_xor_b32 v19, {16*n}, v{V+40+hh}')
            g(f'v_add_u32 v19, v19, v{V+42+hh}')
            g(f'ds_read_b64_tr_b16 v[{V+4*n+2*hh}:{V+4*n+2*hh+1}], v19 offset:{L_X}')
    g(f's_lshl_b32 s21, s{S_W}, 18')
    g(f's_lshl_b32 s22, s{S_RB}, 9')
    g('s_add_u32 s21, s21, s22')
    g(f's_add_u32 s21, s21, {WS_U}')
    for n in range(8):
        g(f's_waitcnt lgkmcnt({2*(7-n)})')
        g(f's_add_u32 s22, s21, {n*32768}')
        g(f'buffer_store_dwordx4 v[{V+4*n}:{V+4*n+3}], v18, s[{SRD_WS}:{SRD_WS+3}], s22 offen sc1')


def flag1_store(g):
    lab = g.uid('L_nf')
    g(f's_cmp_eq_u32 s{S_W}, 0')
    g(f's_cbranch_scc0 {lab}')
    g(f's_lshl_b32 s20, s{S_FB}, 5')
    g(f's_add_u32 s20, s20, s{S_RB}')
    g('s_lshl_b32 s20, s20, 3')
    g(f's_add_u32 s20, s20, {WS_FLAG1}')
    g.flag_store(20, 14)
    g.label(lab)


def z1_epilogue(g):
    V = V_TMP
    lab = g.uid('L_z1g'); done = g.uid('L_z1d')
    g('v_lshlrev_b32 v14, 3, v0')
    g(f's_mul_i32 s20, s{S_MH}, {2*7*512}')
    g(f's_lshl_b32 s21, s{S_NQ}, 10')
    g('s_add_u32 s20, s20, s21')
    g(f's_add_u32 s20, s20, {L_Z1}')
    g('v_add_u32 v14, s20, v14')
    g(f's_cmp_eq_u32 s{S_NQ}, 3')
    g(f's_cbranch_scc1 {lab}')
    g.gelu(list(range(V_Z1, V_Z1 + 16)), V_C1, V)
    for tb in range(2):
        for jt in range(2):
            x = V_Z1 + 8 * tb + 4 * jt
            o = V + 16 + 4 * tb + 2 * jt
            g(f'v_cvt_pk_bf16_f32 v{o}, v{x}, v{x+1}')
            g(f'v_cvt_pk_bf16_f32 v{o+1}, v{x+2}, v{x+3}')
            g(f'ds_write_b64 v14, v[{o}:{o+1}] offset:{tb*7*512 + jt*512}')
    g(f's_branch {done}')
    g.label(lab)
    g.gelu([V_Z1 + 8 * tb + r for tb in range(2) for r in range(4)], V_C1, V)
    for tb in range(2):
        x = V_Z1 + 8 * tb
        o = V + 16 + 4 * tb
        g(f'v_cvt_pk_bf16_f32 v{o}, v{x}, v{x+1}')
        g(f'v_cvt_pk_bf16_f32 v{o+1}, v{x+2}, v{x+3}')
        g(f'ds_write_b64 v14, v[{o}:{o+1}] offset:{tb*7*512}')
    g(f'v_cvt_pk_bf16_f32 v{V}, v{V_Z1+4}, v{V_Z1+12}')
    g(f'v_lshlrev_b32 v{V+1}, 16, v{V}')
    g(f'v_and_b32 v{V+2}, 0xffff0000, v{V}')
    for k in (1, 2):
        g(f'v_mul_f32 v{V+k}, {fbits(-1.4426950408889634)}, v{V+k}')
    for k in (1, 2):
        g(f'v_exp_f32 v{V+k}, v{V+k}')
    for k in (1, 2):
        g(f'v_add_f32 v{V+k}, 1.0, v{V+k}')
    for k in (1, 2):
        g(f'v_rcp_f32 v{V+k}, v{V+k}')
    g('v_and_b32 v15, 15, v0')
    g('v_lshlrev_b32 v15, 2, v15')
    g(f's_lshl_b32 s20, s{S_MH}, 7')
    g(f's_add_u32 s20, s20, {L_GATE}')
    g('v_add_u32 v15, s20, v15')
    g(f'v_cvt_pk_bf16_f32 v{V}, v{V+1}, v{V+2}')
    g(f'v_lshlrev_b32 v{V+1}, 16, v{V}')
    g(f'v_and_b32 v{V+2}, 0xffff0000, v{V}')
    g(f'ds_write_b32 v15, v{V+1}')
    g(f'ds_write_b32 v15, v{V+2} offset:64')
    g.label(done)


def early_params(g):
    lab = g.uid('L_ep'); done = g.uid('L_epd')
    g(f's_cmp_ge_u32 s{S_W}, 4')
    g(f's_cbranch_scc1 {lab}')
    g('v_and_b32 v14, 15, v0')
    g(f's_lshl_b32 s20, s{S_RB}, 6')
    g('v_add_u32 v14, s20, v14')
    g('v_lshlrev_b32 v14, 1, v14')
    for tt in range(4):
        g(f'global_load_ushort v{V_PAR+tt}, v14, s[{P["bsp"]}:{P["bsp"]+1}] offset:{32*tt}')
    g(f's_branch {done}')
    g.label(lab)
    g(f's_lshl_b32 s20, s68, 7')
    g(f's_sub_u32 s21, s{S_W}, 4')
    g('s_lshl_b32 s21, s21, 7')
    g('s_add_u32 s20, s20, s21')
    g('v_lshl_add_u32 v14, v0, 1, s20')
    for k, nm in enumerate(('logA', 'Aim', 'Cre', 'Cim')):
        g(f'global_load_ushort v{V_PAR+k}, v14, s[{P[nm]}:{P[nm]+1}]')
    g(f's_cmp_eq_u32 s{S_W}, 7')
    g(f's_cbranch_scc0 {done}')
    g('v_lshlrev_b32 v14, 4, v0')
    g(f's_mov_b32 m0, {L_GW}')
    g('s_nop 0')
    g(f'global_load_lds_dwordx4 v14, s[{P["gatew"]}:{P["gatew"]+1}]')
    g.label(done)


def phase1(g):
    prologue(g)
    g(f's_cmp_eq_u32 s{S_FB}, 7')
    g('s_cbranch_scc1 L_role7')
    for j in range(4):
        stage_loads(g, j)
        if j == 0:
            early_params(g)
    addr_A(g, natural=False)
    addr_B(g, with_doff=False)
    g(f'v_mov_b32 v{V_C1}, {fbits(-2.0 * 0.7978845608028654 * 1.4426950408889634)}')
    g('v_lshrrev_b32 v14, 4, v0')
    g(f'v_lshlrev_b32 v{V_GW}, 4, v14')
    g(f'v_add_u32 v{V_GW}, {L_GW}, v{V_GW}')
    for j in range(8):
        g(f's_waitcnt vmcnt({outstanding_after(j)})')
        g('s_barrier')
        if j == 0:
            g.stamp('s0')
        stage_loads(g, j + 4)
        stage_compute(g, j)
    g.stamp('z2mm')
    addr_A(g, natural=True)
    addr_B(g, with_doff=True)
    z2_epilogue(g)
    make_tags(g)
    g.stamp('z2epi')
    g('s_branch L_z1')
    g.label('L_role7')
    for j in range(8):
        g.dma(SRD_A, V_XD, S_XSO, 128 * j, S_XM0, L_X + j * 8192)
    early_params(g)
    for j in range(8, 12):
        stage_loads(g, j)
    addr_A(g, natural=True)
    addr_B(g, with_doff=True)
    g(f'v_mov_b32 v{V_C1}, {fbits(-2.0 * 0.7978845608028654 * 1.4426950408889634)}')
    g('v_lshrrev_b32 v14, 4, v0')
    g(f'v_lshlrev_b32 v{V_GW}, 4, v14')
    g(f'v_add_u32 v{V_GW}, {L_GW}, v{V_GW}')
    g('s_waitcnt vmcnt(8) lgkmcnt(0)')
    make_tags(g)
    g('s_barrier')
    u_transpose(g)
    g('s_waitcnt vmcnt(0)')
    g('s_barrier')
    flag1_store(g)
    g.label('L_z1')
    for j in range(8, 16):
        g(f's_waitcnt vmcnt({outstanding_after(j)})')
        g('s_barrier')
        if j + 4 < 16:
            stage_loads(g, j + 4)
        if j == 8:
            lab = g.uid('L_nsp')
            g(f's_cmp_eq_u32 s{S_FB}, 7')
            g(f's_cbranch_scc1 {lab}')
            g(f's_cmp_eq_u32 s{S_W}, 0')
            g(f's_cbranch_scc0 {lab}')
            stats_publish(g)
            g.label(lab)
        stage_compute(g, j)
    g.stamp('z1mm')
    g(f's_cmp_eq_u32 s{S_FB}, 7')
    g('s_cbranch_scc1 L_r7_p1')
    lab = g.uid('L_nsc')
    g(f's_cmp_eq_u32 s{S_W}, 0')
    g(f's_cbranch_scc0 {lab}')
    stats_collect(g)
    g.label(lab)
    g('s_barrier')
    g.stamp('stats')
    normalise_store(g)
    g('s_branch L_p1done')
    g.label('L_r7_p1')
    g('s_barrier')
    g.label('L_p1done')


def dump_lds(g, lds_off, nbytes, ws_off, per_wg):
    g('s_waitcnt vmcnt(0) lgkmcnt(0)')
    g('s_barrier')
    g(f's_lshl_b32 s20, s{S_W}, 10')
    g('v_lshl_add_u32 v14, v0, 4, s20')
    g(f's_lshl_b32 s21, s{S_RB}, 3')
    g(f's_add_u32 s21, s21, s{S_FB}')
    g(f's_mul_i32 s21, s21, {per_wg}')
    g(f's_add_u32 s21, s21, {ws_off}')
    for o in range(0, nbytes, 8192):
        g(f'v_add_u32 v15, {o}, v14')
        g(f'v_add_u32 v13, {lds_off}, v15')
        g(f'v_cmp_gt_u32 vcc, {nbytes}, v15')
        g(f's_and_saveexec_b64 s[{S_EX}:{S_EX+1}], vcc')
        g('ds_read_b128 v[16:19], v13')
        g('s_waitcnt lgkmcnt(0)')
        g(f'buffer_store_dwordx4 v[16:19], v15, s[{SRD_WS}:{SRD_WS+3}], s21 offen')
        g('s_waitcnt vmcnt(0)')
        g(f's_mov_b64 exec, s[{S_EX}:{S_EX+1}]')


def finish(g):
    if g.opt.get('stamps'):
        n = len(g.opt['stamp_names'])
        g('s_waitcnt vmcnt(0) lgkmcnt(0)')
        g(f's_lshl_b32 s20, s2, 3')
        g(f's_add_u32 s20, s20, s{S_W}')
        g('s_lshl_b32 s20, s20, 7')
        g(f's_add_u32 s20, s20, {WS_STAMP}')
        g('v_mov_b32 v1, 0')
        g.one_lane()
        for i in range(n):
            g(f'v_mov_b32 v2, s{S_STAMP+i}')
            g(f'buffer_store_dword v2, v1, s[{SRD_WS}:{SRD_WS+3}], s20 offen offset:{4*i}')
    g.label('L_end')
    g('s_endpgm')


def build(opt):
    g = Gen(opt)
    if opt.get('stamps'):
        for i in range(20):
            g(f's_mov_b32 s{S_STAMP+i}, 0')
    phase1(g)
    upto = opt.get('upto', 'all')
    import gen2
    gen2.rest(g, upto)
    finish(g)
    lines, added = hazard.fix(g.lines)
    head = open('gated_mix__ssm_conv_s4d__mixer_gmlp__prompt.s.ref').read().split('; Override')[0] if not opt.get('nohead') else ''
    hdr = head + f'; @launch grid=(256,1,1) block=(512,1,1) lds={LDS_BYTES}\n.amdgcn_target "amdgcn-amd-amdhsa--gfx950"\n.text\n'
    txt = hdr + kernel_header(NAME) + '\n'.join(lines) + '\n.section .rodata,"a"\n.p2align 6\n' + kernel_desc(NAME, 256, 256)
    return txt, added, len(lines)


if __name__ == '__main__':
    import argparse
    ap = argparse.ArgumentParser()
    ap.add_argument('-o', default='k.s')
    ap.add_argument('--upto', default='all')
    ap.add_argument('--stamps', action='store_true')
    a = ap.parse_args()
    opt = dict(upto=a.upto, stamps=a.stamps)
    txt, added, n = build(opt)
    open(a.o, 'w').write(txt)
    if a.stamps:
        open(a.o + '.stamps', 'w').write('\n'.join(opt['stamp_names']))
    print('lines', n, 'nop states added', added, 'bytes', len(txt))
```
